```python
import torch

def _softmax(x, axis=-1):
    return torch.softmax(x, dim=axis)
def _gelu(x):
    return torch.nn.functional.gelu(x, approximate="tanh")
def _silu(x):
    return torch.nn.functional.silu(x)
def _sigmoid(x):
    return torch.sigmoid(x)
def _layernorm(x, axis=-1, eps=1e-5):
    m = x.mean(dim=axis, keepdim=True)
    v = x.var(dim=axis, keepdim=True, unbiased=False)
    return (x - m) / torch.sqrt(v + eps)
def _scatter_add(tgt, idx, src, axis=0):
    return tgt.clone().index_add_(axis, idx, src)
def _segment_sum(src, seg, n):
    out = torch.zeros((n,) + src.shape[1:], dtype=src.dtype)
    return out.index_add_(0, seg, src)
def _pad(x, pw):
    flat = tuple(v for pair in reversed(pw) for v in pair)
    return torch.nn.functional.pad(x, flat)

kernel_name = 'parallel_sum__mha_block__mixer_channel_mlp__prompt'

def setup_inputs():

    _w = (lambda a: (lambda t: t.to(torch.bfloat16) if t.is_floating_point() else t)(torch.as_tensor(a)))
    def _A_setup():
        B, S, D, H = 1, 2048, 640, 32
        return {
            "x": _w((lambda *s: torch.randn(*s, dtype=torch.bfloat16) * 0.05)(B, S, D)),
            "wqkv": _w((lambda *s: torch.randn(*s, dtype=torch.bfloat16) * 0.05)(D, 3 * D)),
            "wo": _w((lambda *s: torch.randn(*s, dtype=torch.bfloat16) * 0.05)(D, D)),
        }
    _A_in = _A_setup()

    def _B_setup():
        B, S, D, F = 1, 2048, 640, 1536
        return {
            "x": _w((lambda *s: torch.randn(*s, dtype=torch.bfloat16) * 0.05)(B, S, D)),
            "w1": _w((lambda *s: torch.randn(*s, dtype=torch.bfloat16) * 3.2)(D, F) * (D ** -0.5)),
            "b1": _w((lambda *s: torch.randn(*s, dtype=torch.bfloat16) * 1.6)(F)),
            "w2": _w((lambda *s: torch.randn(*s, dtype=torch.bfloat16) * 0.1)(F, D) * (F ** -0.5)),
            "b2": _w((lambda *s: torch.randn(*s, dtype=torch.bfloat16) * 0.2)(D)),
        }
    _B_in = _B_setup()

    return {
        "A_x": _A_in["x"],
        "A_wqkv": _A_in["wqkv"],
        "A_wo": _A_in["wo"],
        "B_x": _B_in["x"],
        "B_w1": _B_in["w1"],
        "B_b1": _B_in["b1"],
        "B_w2": _B_in["w2"],
        "B_b2": _B_in["b2"],
    }

def reference(A_x, A_wqkv, A_wo, B_x, B_w1, B_b1, B_w2, B_b2):
    def _A_ref(x, wqkv, wo):
        B, S, D = x.shape
        H = 32
        Dh = D // H
        qkv = (lambda x, *d: x.permute(*d))((x @ wqkv).reshape(B, S, 3, H, Dh), 2, 0, 3, 1, 4)
        q, k, v = qkv[0], qkv[1], qkv[2]
        scores = torch.einsum("bhqd,bhkd->bhqk", q, k) * (Dh ** -0.5)
        p = _softmax(scores, axis=-1)
        o = torch.einsum("bhqk,bhkd->bhqd", p, v)
        return (lambda x, *d: x.permute(*d))(o, 0, 2, 1, 3).reshape(B, S, D) @ wo

    def _B_ref(x, w1, b1, w2, b2):
        y = _layernorm(x, axis=-1)
        h = _gelu(torch.einsum("bsd,df->bsf", y, w1) + b1)
        return torch.einsum("bsf,fd->bsd", h, w2) + b2

    x = A_x
    xn = _layernorm(x, axis=-1)
    return x + _A_ref(xn, A_wqkv, A_wo) + _B_ref(xn, B_w1, B_b1, B_w2, B_b2)
```

```python
import re
class Asm:
    def __init__(self):
        self.lines = []
        self.uid = 0
    def __call__(self, s):
        for l in s.strip("\n").split("\n"):
            l = l.rstrip()
            if not l.strip():
                continue
            ls = l.strip()
            m = re.search(r"offset:(\d+)", ls)
            if m:
                lim = 4095 if ls.startswith("buffer_") else 65535
                assert int(m.group(1)) <= lim, ls
            if ls.endswith(":") and " " not in ls:
                self.lines.append(ls)
            else:
                self.lines.append("    " + ls)
    def label(self, name):
        self.lines.append(name + ":")
    def newlabel(self, base):
        self.uid += 1
        return f"L_{base}_{self.uid}"
    def comment(self, s):
        self.lines.append("    ; " + s)
    def text(self):
        return "\n".join(self.lines) + "\n"

def vr(b, n=1):
    return f"v{b}" if n == 1 else f"v[{b}:{b+n-1}]"
def ar(b, n=1):
    return f"a{b}" if n == 1 else f"a[{b}:{b+n-1}]"
def sr(b, n=1):
    return f"s{b}" if n == 1 else f"s[{b}:{b+n-1}]"

def kernel_header(name):
    return f""".globl {name}
.p2align 8
.type {name},@function
{name}:
"""

def kernel_desc(name, vgpr, sgpr=102, accum=None):
    if accum is None:
        accum = (vgpr + 3) // 4 * 4
    return f""".p2align 6
.amdhsa_kernel {name}
  .amdhsa_next_free_vgpr {vgpr}
  .amdhsa_next_free_sgpr {sgpr}
  .amdhsa_accum_offset {accum}
  .amdhsa_group_segment_fixed_size 0
  .amdhsa_kernarg_size 88
  .amdhsa_user_sgpr_count 2
  .amdhsa_user_sgpr_kernarg_segment_ptr 1
  .amdhsa_system_sgpr_workgroup_id_x 1
.end_amdhsa_kernel
"""

import struct
def f32bits(x):
    return struct.unpack("<I", struct.pack("<f", x))[0]
```

```python
import sys
from asmlib import *
import importlib
HDR = open("parallel_sum__mha_block__mixer_channel_mlp__prompt.s.ref").read().split("; Override launch")[0]
def build(kernels, path):
    out = HDR
    for (name, grid, block, lds, text, desc) in kernels:
        out += f"; @launch kernel={name} grid=({grid},1,1) block=({block},1,1) lds={lds}\n"
    out += '.amdgcn_target "amdgcn-amd-amdhsa--gfx950"\n.text\n'
    for (name, grid, block, lds, text, desc) in kernels:
        out += text
    out += '.section .rodata,"a"\n'
    for (name, grid, block, lds, text, desc) in kernels:
        out += desc
    open(path, "w").write(out)
```

```python
from asmlib import *
import math
from k2 import QKV_BYTES, AP_OFF, AP_LD, AP_BYTES, HEADB

WSTG = 16384
XSTG = 8192
STG = WSTG + XSTG
NSTG = 6
STAT_OFF = NSTG*STG
K1_LDS = STAT_OFF + 1024 + 1024
CS = math.log2(math.e)/math.sqrt(20.0)

class VmTrack:
    def __init__(self): self.q = []
    def issue(self, tag, n=1):
        for _ in range(n): self.q.append(tag)
    def wait_for(self, tag):
        ids = [i for i, t in enumerate(self.q) if t == tag]
        if not ids: return min(63, len(self.q))
        idx = max(ids)
        n = len(self.q) - 1 - idx
        self.q = self.q[idx+1:]
        return n

def gen_k1(name="qkv_kernel", diag=False, mimic=True, X=()):
    a = Asm()
    a.lines.append(kernel_header(name).rstrip("\n"))
    vWD = 2
    vXD = 6
    vAD = [8, 240]
    T = 18
    Wf = 24
    Xf = 80
    U = 112
    ACC = 128
    E = 250
    aRS, aRQ, aCS, aONE = 0, 8, 16, 32
    sWave, sWm, sWn, sRb, sCg, sCol, sLd, sIsMlp, sXsrc, sWsrc, sWstep = 16, 17, 18, 19, 20, 21, 22, 23, 24, 25, 26
    sM0w, sM0x = 56, 57
    MF = "v_mfma_f32_16x16x32_bf16"
    a(f"""
    s_cmp_ge_u32 s2, 256
    s_cbranch_scc1 L_k1_end
    s_load_dwordx4 s[4:7], s[0:1], 0
    s_load_dwordx4 s[36:39], s[0:1], 32
    s_load_dwordx2 s[40:41], s[0:1], 80
    DIAG0
    v_and_b32 v1, 63, v0
    v_lshrrev_b32 v{T}, 6, v0
    s_and_b32 s28, s2, 7
    s_lshr_b32 s29, s2, 3
    v_readfirstlane_b32 s{sWave}, v{T}
    s_and_b32 s30, s28, 1
    s_lshl_b32 s30, s30, 3
    s_and_b32 s31, s29, 7
    s_add_u32 s{sRb}, s30, s31
    s_lshr_b32 s30, s28, 1
    s_lshl_b32 s30, s30, 2
    s_lshr_b32 s31, s29, 3
    s_add_u32 s{sCg}, s30, s31
    s_and_b32 s{sWm}, s{sWave}, 1
    s_lshr_b32 s{sWn}, s{sWave}, 1
    s_movk_i32 s{sLd}, 3840
    s_movk_i32 s31, 1696
    s_cmp_ge_u32 s{sCg}, 9
    s_cselect_b32 s{sIsMlp}, 1, 0
    s_cselect_b32 s{sLd}, 3072, s{sLd}
    s_cselect_b32 s30, 9, 0
    s_cselect_b32 s31, 1312, s31
    s_sub_u32 s30, s{sCg}, s30
    s_mul_i32 s{sCol}, s30, 224
    s_min_u32 s{sCol}, s{sCol}, s31
    s_movk_i32 s67, 0x78
    v_lshrrev_b32 v{T}, 2, v1
    v_lshrrev_b32 v{T+1}, 4, v1
    v_lshlrev_b32 v{E}, 1, v{T+1}
    v_lshrrev_b32_e64 v{E}, v{E}, s67
    v_xor_b32 v{E}, v{E}, v1
    v_and_b32 v{E}, 3, v{E}
    v_mul_u32_u24 v{vXD}, 1280, v{T}
    v_lshl_add_u32 v{vXD}, v{E}, 4, v{vXD}
    v_add_u32 v{vXD+1}, {16*1280-1024}, v{vXD}
    s_lshl_b32 s28, s{sRb}, 2
    s_add_u32 s28, s28, s{sWave}
    s_mul_i32 s{sXsrc}, s28, {32*1280}
    s_lshl_b32 s{sM0x}, s{sWave}, 11
    s_add_u32 s{sM0x}, s{sM0x}, {WSTG}
    s_lshl_b32 s{sM0w}, s{sWave}, 12
    v_lshrrev_b32 v{T}, 5, v1
    s_and_b32 s28, s{sWave}, 1
    s_lshl_b32 s28, s28, 1
    s_lshr_b32 s29, s{sWave}, 1
    s_lshl_b32 s29, s29, 2
    s_add_u32 s28, s28, s29
    v_add_u32 v{T+2}, s28, v{T}
    v_bfe_u32 v{E}, v1, 1, 4
    v_xor_b32 v{E}, v{E}, v{T+2}
    v_mul_lo_u32 v{vWD}, v{T}, s{sLd}
    v_lshl_add_u32 v{vWD}, v{E}, 5, v{vWD}
    v_and_b32 v{E+1}, 1, v1
    v_lshl_add_u32 v{vWD}, v{E+1}, 4, v{vWD}
    v_cmp_gt_u32 vcc, 14, v{E}
    v_mov_b32 v{E+1}, 0x7f000000
    s_lshl_b32 s29, s{sLd}, 2
    s_sub_u32 s29, s29, 1024
    v_cndmask_b32 v{vWD}, v{E+1}, v{vWD}, vcc
    s_lshl_b32 s30, s{sLd}, 4
    s_sub_u32 s30, s30, 2048
    v_add_u32 v{vWD+1}, s29, v{vWD}
    v_add_u32 v{vWD+2}, s30, v{vWD}
    v_add_u32 v{vWD+3}, s29, v{vWD+2}
    s_and_b32 s28, s{sWave}, 1
    s_lshr_b32 s29, s{sWave}, 1
    s_lshl_b32 s29, s29, 2
    s_or_b32 s28, s28, s29
    s_lshl_b32 s28, s28, 1
    s_mul_i32 s{sWsrc}, s28, s{sLd}
    s_lshl_b32 s29, s{sCol}, 1
    s_add_u32 s{sWsrc}, s{sWsrc}, s29
    s_lshl_b32 s{sWstep}, s{sLd}, 5
    s_waitcnt lgkmcnt(0)
    s_mov_b32 s8, s4
    s_mov_b32 s9, s5
    s_mov_b32 s10, {2048*1280}
    s_mov_b32 s11, 0x00020000
    s_cmp_lg_u32 s{sIsMlp}, 0
    s_cselect_b32 s12, s36, s6
    s_cselect_b32 s13, s37, s7
    s_mul_i32 s14, s{sLd}, 640
    s_mov_b32 s15, 0x00020000
    """)
    vm = VmTrack()
    def dma_stage(s):
        buf = (s % NSTG)*STG
        G1 = [f"s_add_u32 s58, s{sM0w}, {buf}", f"s_mov_b32 m0, s58", f"s_add_u32 s59, s{sXsrc}, {s*64}"]
        G1 += [f"buffer_load_dwordx4 v{vWD+i}, s[12:15], s{sWsrc} offen offset:{i*1024} lds" for i in range(4)]
        G2 = [f"s_add_u32 s58, s{sM0x}, {buf}", f"s_mov_b32 m0, s58", f"s_add_u32 s{sWsrc}, s{sWsrc}, s{sWstep}"]
        G2 += [f"buffer_load_dwordx4 v{vXD+i}, s[8:11], s59 offen offset:{i*1024} lds" for i in range(2)]
        return G1 + G2
    def emit_dma(L, s):
        for l in L:
            a(l)
            if l.endswith("lds"): vm.issue(("d", s))
    for s in range(NSTG-1):
        emit_dma(dma_stage(s), s)
    a(f"""
    s_mov_b32 s44, s40
    s_mov_b32 s45, s41
    s_mov_b32 s46, {QKV_BYTES}
    s_mov_b32 s47, 0x00020000
    s_add_u32 s48, s40, {AP_OFF}
    s_addc_u32 s49, s41, 0
    s_mov_b32 s50, {AP_BYTES}
    s_mov_b32 s51, 0x00020000
    s_mov_b32 s52, s38
    s_mov_b32 s53, s39
    s_mov_b32 s54, 3072
    s_mov_b32 s55, 0x00020000
    v_and_b32 v{T}, 15, v1
    v_bfe_u32 v{E}, v1, 2, 2
    v_lshlrev_b32 v{E}, 1, v{E}
    v_lshrrev_b32_e64 v{E}, v{E}, s67
    v_xor_b32 v{E}, v{E}, v{T+1}
    v_and_b32 v{E}, 3, v{E}
    v_lshlrev_b32 v{E}, 4, v{E}
    v_lshl_add_u32 v{E}, v{T}, 6, v{E}
    s_lshl_b32 s28, s{sWm}, 12
    s_add_u32 s28, s28, {WSTG}
    s_lshl_b32 s29, s{sWn}, 11
    s_add_u32 s30, s28, s29
    v_add_u32 v{vAD[0]+7}, s30, v{E}
    s_xor_b32 s29, s29, 2048
    s_add_u32 s30, s28, s29
    v_add_u32 v{vAD[0]+8}, s30, v{E}
    ;   lds row = (r&1) + 4*(q>>1) + 8*(r>>1) + 16*(q&1) (+2*hf) ; swizzle h = r + 4*(q&1)
    v_bfe_u32 v{E}, v1, 2, 1
    v_bfe_u32 v{E+1}, v1, 5, 1
    v_lshl_add_u32 v{E}, v{E+1}, 2, v{E}
    v_bfe_u32 v{E+1}, v1, 3, 1
    v_lshl_add_u32 v{E}, v{E+1}, 3, v{E}
    v_bfe_u32 v{E+1}, v1, 4, 1
    v_lshl_add_u32 v{E}, v{E+1}, 4, v{E}
    v_lshlrev_b32 v{E}, 9, v{E}
    v_bfe_u32 v{E+2}, v1, 2, 2
    v_lshl_add_u32 v{E+2}, v{E+1}, 2, v{E+2}
    v_lshl_add_u32 v{E}, v{E+2}, 5, v{E}
    v_and_b32 v{E+2}, 3, v1
    v_lshl_add_u32 v{E}, v{E+2}, 3, v{E}
    s_mul_i32 s28, s{sWn}, 7
    s_lshl_b32 s29, s{sWm}, 2
    """)
    for tt in range(7):
        a(f"""
        s_add_u32 s30, s29, {tt}
        s_cmp_ge_u32 s30, 7
        s_cselect_b32 s31, 7, 0
        s_sub_u32 s30, s30, s31
        s_add_u32 s{60+tt}, s30, s28
        s_lshl_b32 s30, s{60+tt}, 5
        v_xor_b32 v{vAD[0]+tt}, s30, v{E}
        """)
    for i in range(9):
        a(f"v_add_u32 v{vAD[1]+i}, {3*STG}, v{vAD[0]+i}")
    a(f"""
    s_lshl_b32 s28, s2, 4
    v_lshrrev_b32 v{E}, 4, v0
    v_add_u32 v{E}, s28, v{E}
    v_mul_u32_u24 v{E}, 1536, v{E}
    v_and_b32 v{E+1}, 15, v0
    v_lshl_add_u32 v{E}, v{E+1}, 4, v{E}
    v_add_u32 v{E}, {32*HEADB+1280}, v{E}
    v_mov_b32 v{U}, 0x3f803f80
    v_mov_b32 v{U+1}, 0
    v_mov_b32 v{U+2}, 0x3f803f80
    v_mov_b32 v{U+3}, 0
    buffer_store_dwordx4 v[{U}:{U+3}], v{E}, s[44:47], 0 offen
    """)
    vm.issue(("p", 0), 1)
    for tt in range(7):
        a(f"""
        s_lshl_b32 s28, s{60+tt}, 4
        s_add_u32 s28, s28, s{sCol}
        s_lshl_b32 s28, s28, 1
        v_lshl_add_u32 v{E}, v{T+1}, 3, s28
        buffer_load_dwordx2 a[{40+2*tt}:{41+2*tt}], v{E}, s[52:55], 0 offen
        """)
        vm.issue(("b", 0))
    for i in range(112): a(f"v_mov_b32 v{ACC+i}, 0")
    for i in range(32): a(f"v_accvgpr_write_b32 a{i}, 0")
    for i in range(4): a(f"v_accvgpr_write_b32 a{aONE+i}, v{U}")
    def freads(kk):
        L = []
        st = kk % NSTG
        ad = vAD[st // 3]; ob = (st % 3)*STG
        for rt in range(4):
            r = Xf + (kk & 1)*16 + rt*4
            L.append(f"ds_read_b128 v[{r}:{r+3}], v{ad+7+(rt>>1)} offset:{ob + (rt & 1)*1024}")
        for tt in range(7):
            for hf in range(2):
                r = Wf + (kk & 1)*28 + tt*4 + hf*2
                L.append(f"ds_read_b64_tr_b16 v[{r}:{r+1}], v{ad+tt} offset:{ob + hf*1024}")
        return L
    n = vm.wait_for(("d", 0))
    a(f"s_waitcnt vmcnt({n})")
    a("s_barrier")
    for l in freads(0): a(l)
    if diag: a("s_memtime s[34:35]")
    for kk in range(20):
        xb = Xf + (kk & 1)*16; wb = Wf + (kk & 1)*28
        if kk < 19:
            n = vm.wait_for(("d", kk+1))
            a(f"s_waitcnt vmcnt({n}) lgkmcnt(0)")
            if "nobar" not in X: a("s_barrier")
        else:
            a("s_waitcnt lgkmcnt(0)")
        rd = freads(kk+1) if kk < 19 else []
        dm = dma_stage(kk+NSTG-1) if kk+NSTG-1 < 20 else []
        mf = []
        for tt in range(7):
            for rt in range(4):
                c = ACC + (tt*4+rt)*4
                mf.append(f"{MF} v[{c}:{c+3}], v[{wb+tt*4}:{wb+tt*4+3}], v[{xb+rt*4}:{xb+rt*4+3}], v[{c}:{c+3}]")
        if "nostats" not in X:
            for rt in range(2):
                mf.append(f"{MF} a[{aRS+4*rt}:{aRS+4*rt+3}], a[{aONE}:{aONE+3}], v[{xb+rt*4}:{xb+rt*4+3}], a[{aRS+4*rt}:{aRS+4*rt+3}]")
                mf.append(f"{MF} a[{aRQ+4*rt}:{aRQ+4*rt+3}], v[{xb+rt*4}:{xb+rt*4+3}], v[{xb+rt*4}:{xb+rt*4+3}], a[{aRQ+4*rt}:{aRQ+4*rt+3}]")
            for tt in range(4):
                mf.append(f"{MF} a[{aCS+4*tt}:{aCS+4*tt+3}], v[{wb+tt*4}:{wb+tt*4+3}], a[{aONE}:{aONE+3}], a[{aCS+4*tt}:{aCS+4*tt+3}]")
        if "nodma" in X: dm = []
        if "noreads" in X: rd = []
        nm = len(mf)
        slots = [[] for _ in range(nm)]
        for i, l in enumerate(rd): slots[i].append(l)
        for i, l in enumerate(dm): slots[min(nm-1, 14+i)].append(l)
        for i in range(nm):
            a(mf[i])
            emit_dma(slots[i], kk+NSTG-1)
    a("DIAG1")
    a(f"""
    v_and_b32 v{T}, 15, v1
    v_lshrrev_b32 v{T+1}, 4, v1
    s_lshl_b32 s28, s{sWm}, 2
    s_lshl_b32 s29, s{sWn}, 1
    s_add_u32 s28, s28, s29
    s_lshl_b32 s28, s28, 7
    s_add_u32 s28, s28, {STAT_OFF}
    v_lshl_add_u32 v{E}, v{T}, 3, s28
    v_and_b32 v{E+1}, 3, v1
    v_bfe_u32 v{E+2}, v1, 2, 2
    s_nop 7
    """)
    for rt in range(2):
        for i in range(4):
            a(f"v_accvgpr_read_b32 v{U+i}, a{aRQ+4*rt+i}")
        a(f"v_accvgpr_read_b32 v{U+4}, a{aRS+4*rt}")
        for i in range(1, 4):
            a(f"""
            v_cmp_eq_u32 vcc, {i}, v{E+1}
            s_nop 1
            v_cndmask_b32 v{U}, v{U}, v{U+i}, vcc
            """)
        a(f"""
        ds_write_b32 v{E}, v{U+4} offset:{128*rt}
        v_cmp_eq_u32 vcc, v{E+2}, v{T+1}
        s_and_saveexec_b64 s[28:29], vcc
        ds_write_b32 v{E}, v{U} offset:{128*rt+4}
        s_mov_b64 exec, s[28:29]
        """)
    for tt in range(4):
        a(f"""
        s_lshl_b32 s28, s{60+tt}, 6
        s_add_u32 s28, s28, {STAT_OFF+1024}
        v_lshl_add_u32 v{E+1}, v{T+1}, 4, s28
        ds_write_b128 v{E+1}, a[{aCS+4*tt}:{aCS+4*tt+3}]
        """)
    a("s_waitcnt lgkmcnt(0)\ns_barrier")
    RW = Wf; CW = Wf + 8
    for rt in range(4):
        a(f"""
        s_lshl_b32 s28, s{sWn}, 1
        s_add_u32 s28, s28, {rt}
        s_and_b32 s28, s28, 3
        s_lshl_b32 s29, s{sWm}, 2
        s_add_u32 s28, s28, s29
        s_lshl_b32 s28, s28, 7
        s_add_u32 s28, s28, {STAT_OFF}
        v_lshl_add_u32 v{E}, v{T}, 3, s28
        ds_read_b64 v[{RW+2*rt}:{RW+2*rt+1}], v{E}
        """)
    for tt in range(7):
        a(f"""
        s_lshl_b32 s28, s{60+tt}, 6
        s_add_u32 s28, s28, {STAT_OFF+1024}
        v_lshl_add_u32 v{E}, v{T+1}, 4, s28
        ds_read_b128 v[{CW+4*tt}:{CW+4*tt+3}], v{E}
        """)
    a("s_waitcnt lgkmcnt(0)")
    def bf16r(reg, tmp):
        a(f"""
        v_cvt_pk_bf16_f32 v{tmp}, v{reg}, v{reg}
        v_lshlrev_b32 v{reg}, 16, v{tmp}
        """)
    a(f"s_mov_b32 s28, {f32bits(1.0/640)}")
    a(f"s_mov_b32 s29, {f32bits(1e-5)}")
    for rt in range(4):
        m = RW+2*rt; v = RW+2*rt+1
        a(f"""
        v_mul_f32 v{m}, s28, v{m}
        v_mul_f32 v{v}, s28, v{v}
        v_fma_f32 v{v}, -v{m}, v{m}, v{v}
        v_max_f32 v{v}, 0, v{v}
        v_mov_b32 v{E}, v{m}
        v_mov_b32 v{E+1}, v{v}
        """)
        if mimic:
            bf16r(m, E+2); bf16r(v, E+2)
        a(f"v_add_f32 v{v}, s29, v{v}")
        if mimic: bf16r(v, E+2)
        a(f"v_sqrt_f32 v{v}, v{v}\ns_nop 0")
        if mimic: bf16r(v, E+2)
        a(f"""
        v_mov_b32 v{E+3}, v{v}
        v_rcp_f32 v{v}, v{v}
        s_cmp_eq_u32 s{sIsMlp}, 0
        s_cbranch_scc1 L_k1_rp{rt}
        v_sub_f32 v{E}, v{E}, v{m}
        v_mul_f32 v{E}, v{E}, v{v}
        v_mul_f32 v{E+1}, v{E+1}, v{v}
        v_mul_f32 v{E+1}, v{E+1}, v{v}
        """)
        if mimic:
            bf16r(E, E+2); bf16r(E+1, E+2)
        a(f"v_add_f32 v{E+1}, s29, v{E+1}")
        if mimic: bf16r(E+1, E+2)
        a(f"v_sqrt_f32 v{E+1}, v{E+1}\ns_nop 0")
        if mimic: bf16r(E+1, E+2)
        a(f"""
        v_rcp_f32 v{E+1}, v{E+1}
        v_fma_f32 v{m}, v{E}, v{E+3}, v{m}
        v_mul_f32 v{v}, v{v}, v{E+1}
        L_k1_rp{rt}:
        """)
    RO = Wf + 40; R32 = Wf + 44; SC = Wf + 48
    a(f"""
    s_cmp_lg_u32 s{sIsMlp}, 0
    s_cbranch_scc1 L_k1_mlp
    """)
    def rowtile_s28(rt):
        a(f"""
        s_lshl_b32 s28, s{sWn}, 1
        s_add_u32 s28, s28, {rt}
        s_and_b32 s28, s28, 3
        s_lshl_b32 s29, s{sWm}, 2
        s_add_u32 s28, s28, s29
        s_lshl_b32 s29, s{sRb}, 3
        s_add_u32 s28, s28, s29
        """)
    for rt in range(4):
        rowtile_s28(rt)
        a(f"""
        s_lshr_b32 s29, s28, 1
        s_mul_i32 s29, s29, 1536
        v_mov_b32 v{RO+rt}, s29
        s_and_b32 s28, s28, 1
        s_lshl_b32 s28, s28, 4
        v_add_u32 v{R32+rt}, s28, v{T}
        """)
    BC = "op_sel_hi:[0,1,1]"
    for tt in range(7):
        a(f"""
        s_lshl_b32 s28, s{60+tt}, 4
        s_add_u32 s28, s28, s{sCol}
        s_cmp_lt_u32 s28, 640
        s_cselect_b32 s29, {f32bits(CS)}, 1.0
        s_lshr_b32 s28, s28, 2
        v_add_u32 v{E}, s28, v{T+1}
        v_mul_u32_u24 v{E+1}, 0xcccd, v{E}
        v_lshrrev_b32 v{E+1}, 18, v{E+1}
        v_mul_u32_u24 v{E+2}, 5, v{E+1}
        v_sub_u32 v{E}, v{E}, v{E+2}
        v_cmp_lt_u32 vcc, 63, v{E+1}
        v_mul_u32_u24 v{E+1}, {HEADB}, v{E+1}
        v_lshlrev_b32 v{E+3}, 2, v{E}
        v_cndmask_b32 v{E+3}, 0, v{E+3}, vcc
        v_lshl_add_u32 v{E}, v{E}, 8, v{E+1}
        """)
        for rt in range(4):
            a(f"v_mul_f32 v{SC+2*rt}, s29, v{RW+2*rt+1}")
        for rt in range(4):
            c = ACC + (tt*4+rt)*4
            for h in range(2):
                a(f"v_pk_fma_f32 v[{c+2*h}:{c+2*h+1}], v[{RW+2*rt}:{RW+2*rt+1}], v[{CW+4*tt+2*h}:{CW+4*tt+2*h+1}], v[{c+2*h}:{c+2*h+1}] {BC} neg_lo:[1,0,0] neg_hi:[1,0,0]")
            for h in range(2):
                a(f"v_pk_mul_f32 v[{c+2*h}:{c+2*h+1}], v[{SC+2*rt}:{SC+2*rt+1}], v[{c+2*h}:{c+2*h+1}] op_sel_hi:[0,1]")
            a(f"""
            v_add_u32 v{U+rt}, v{E+3}, v{R32+rt}
            v_cvt_pk_bf16_f32 v{c}, v{c}, v{c+1}
            v_and_b32 v{U+rt}, 31, v{U+rt}
            v_cvt_pk_bf16_f32 v{c+1}, v{c+2}, v{c+3}
            v_lshl_add_u32 v{U+rt}, v{U+rt}, 3, v{E}
            v_add_u32 v{c+2}, v{U+rt}, v{RO+rt}
            buffer_store_dwordx2 v[{c}:{c+1}], v{c+2}, s[44:47], 0 offen
            """)
    a("s_branch L_k1_fin")
    a("L_k1_mlp:")
    for rt in range(4):
        rowtile_s28(rt)
        a(f"""
        s_mul_i32 s28, s28, {68*1024}
        v_lshl_add_u32 v{RO+rt}, v{T}, 4, s28
        """)
    k0 = -2.0*math.log2(math.e)*math.sqrt(2.0/math.pi)
    k1 = k0*0.044715
    KK = Wf + 52
    BU = Xf
    G = Xf + 8
    a(f"""
    v_mov_b32 v{KK}, {f32bits(k1)}
    v_mov_b32 v{KK+1}, {f32bits(k0)}
    v_mov_b32 v{KK+2}, 1.0
    v_mov_b32 v{KK+3}, 1.0
    s_waitcnt vmcnt(0)
    """)
    for tt in range(7):
        a(f"""
        s_lshl_b32 s28, s{60+tt}, 4
        s_add_u32 s28, s28, s{sCol}
        s_lshr_b32 s28, s28, 2
        s_add_u32 s28, s28, 160
        v_add_u32 v{E}, s28, v{T+1}
        v_lshrrev_b32 v{E+1}, 3, v{E}
        v_lshlrev_b32 v{E+1}, 10, v{E+1}
        v_and_b32 v{E+2}, 3, v{E}
        v_lshl_add_u32 v{E+1}, v{E+2}, 8, v{E+1}
        v_bfe_u32 v{E+2}, v{E}, 2, 1
        v_lshl_add_u32 v{E}, v{E+2}, 3, v{E+1}
        v_accvgpr_read_b32 v{E+4}, a{40+2*tt}
        v_accvgpr_read_b32 v{E+5}, a{41+2*tt}
        v_lshlrev_b32 v{BU}, 16, v{E+4}
        v_and_b32 v{BU+1}, 0xffff0000, v{E+4}
        v_lshlrev_b32 v{BU+2}, 16, v{E+5}
        v_and_b32 v{BU+3}, 0xffff0000, v{E+5}
        """)
        for rp in range(2):
            cs = [ACC + (tt*4+2*rp+j)*4 for j in range(2)]
            rts = [2*rp, 2*rp+1]
            prs = [(cs[j]+2*h, rts[j], h, G + 4*j + 2*h) for j in range(2) for h in range(2)]
            for (c, rt, h, g) in prs:
                a(f"v_pk_fma_f32 v[{c}:{c+1}], v[{RW+2*rt}:{RW+2*rt+1}], v[{CW+4*tt+2*h}:{CW+4*tt+2*h+1}], v[{c}:{c+1}] {BC} neg_lo:[1,0,0] neg_hi:[1,0,0]")
            for (c, rt, h, g) in prs:
                a(f"v_pk_fma_f32 v[{c}:{c+1}], v[{RW+2*rt}:{RW+2*rt+1}], v[{c}:{c+1}], v[{BU+2*h}:{BU+2*h+1}] op_sel:[1,0,0] op_sel_hi:[1,1,1]")
            for (c, rt, h, g) in prs:
                a(f"v_pk_mul_f32 v[{g}:{g+1}], v[{c}:{c+1}], v[{c}:{c+1}]")
            for (c, rt, h, g) in prs:
                a(f"v_pk_fma_f32 v[{g}:{g+1}], v[{g}:{g+1}], v[{KK}:{KK+1}], v[{KK}:{KK+1}] op_sel:[0,0,1] op_sel_hi:[1,0,1]")
            for (c, rt, h, g) in prs:
                a(f"v_pk_mul_f32 v[{g}:{g+1}], v[{g}:{g+1}], v[{c}:{c+1}]")
            for i in range(8):
                a(f"v_exp_f32 v{G+i}, v{G+i}")
            for (c, rt, h, g) in prs:
                a(f"v_pk_add_f32 v[{g}:{g+1}], v[{g}:{g+1}], v[{KK+2}:{KK+3}]")
            for i in range(8):
                a(f"v_rcp_f32 v{G+i}, v{G+i}")
            for (c, rt, h, g) in prs:
                a(f"v_pk_mul_f32 v[{c}:{c+1}], v[{c}:{c+1}], v[{g}:{g+1}]")
            for j in range(2):
                c = cs[j]
                a(f"""
                v_cvt_pk_bf16_f32 v{c}, v{c}, v{c+1}
                v_cvt_pk_bf16_f32 v{c+1}, v{c+2}, v{c+3}
                v_add_u32 v{c+2}, v{E}, v{RO+rts[j]}
                buffer_store_dwordx2 v[{c}:{c+1}], v{c+2}, s[48:51], 0 offen
                """)
    a("L_k1_fin:")
    if diag:
        a(f"""
        s_waitcnt vmcnt(0)
        s_memtime s[70:71]
        s_memrealtime s[72:73]
        s_waitcnt lgkmcnt(0)
        s_sub_u32 s34, s34, s32
        s_sub_u32 s68, s68, s32
        s_sub_u32 s70, s70, s32
        s_sub_u32 s72, s72, s74
        s_add_u32 s44, s40, 0x2000000
        s_addc_u32 s45, s41, 0
        s_mov_b32 s46, 0x100000
        s_mov_b32 s47, 0x00020000
        s_lshl_b32 s28, s2, 3
        s_add_u32 s28, s28, s{sWave}
        s_lshl_b32 s28, s28, 4
        v_mov_b32 v{E}, s28
        v_mov_b32 v{U}, s34
        v_mov_b32 v{U+1}, s68
        v_mov_b32 v{U+2}, s70
        v_mov_b32 v{U+3}, s72
        buffer_store_dwordx4 v[{U}:{U+3}], v{E}, s[44:47], 0 offen
        """)
    a("""
    L_k1_end:
    s_endpgm
    """)
    txt = a.text()
    txt = txt.replace("    DIAG0\n", "    s_memtime s[32:33]\n    s_memrealtime s[74:75]\n" if diag else "")
    txt = txt.replace("    DIAG1\n", "    s_memtime s[68:69]\n" if diag else "")
    return txt, kernel_desc(name, 256+56, 96, accum=256)
```

```python
from asmlib import *

QKV_BYTES = 96*2048*48
AP_OFF = 0x900000
AP_LD = 4352
AP_BYTES = 2048*AP_LD
HEADB = 2048*48
STEPK = 128
REGB = STEPK*48
BUFB = 4*REGB
NBUF = 3
NSTEP = 1024//STEPK
TPS = STEPK//32
MERGE_OFF = NBUF*BUFB
SCR_OFF = MERGE_OFF + 8*3072
K2_LDS = SCR_OFF + 8*3072

def gen_k2(name="attn_kernel", diag=False):
    a = Asm()
    a.lines.append(kernel_header(name).rstrip("\n"))
    vDMA, vKaL, vKbL = 2, 3, 4
    vKaC, vKbC, vKaN, vKbN = 5, 6, 7, 8
    vVL, vVC, vVN = 128, 132, 136
    QA = [12, 20]
    Kf0, Kf1 = 28, 32
    Vf = 36
    P = 44
    SA, SB = 52, 68
    OA = [84, 100]
    T = 116
    sWave, sHead, sQb, sCh, sSrc, sBufN, sBufD, sPass, sQoff, sKbase, sHalf = 16, 17, 18, 19, 20, 21, 22, 23, 24, 25, 31
    MF = "v_mfma_f32_32x32x16_bf16"
    a(f"""
    s_cmp_ge_u32 s2, 256
    s_cbranch_scc1 L_k2_end
    s_load_dwordx2 s[4:5], s[0:1], 80
    DIAG0
    v_and_b32 v1, 63, v0
    v_lshrrev_b32 v{T}, 6, v0
    s_and_b32 s26, s2, 7
    s_lshr_b32 s27, s2, 3
    v_readfirstlane_b32 s{sWave}, v{T}
    s_lshl_b32 s{sHead}, s26, 2
    s_and_b32 s28, s27, 3
    s_add_u32 s{sHead}, s{sHead}, s28
    s_lshr_b32 s{sQb}, s27, 2
    s_lshr_b32 s{sHalf}, s{sWave}, 2
    v_lshlrev_b32 v{vDMA}, 4, v1
    v_and_b32 v{T}, 31, v1
    v_lshrrev_b32 v{T+1}, 5, v1
    v_lshlrev_b32 v{vKbL}, 3, v{T}
    v_lshl_add_u32 v{vKaL}, v{T+1}, 9, v{vKbL}
    v_lshl_add_u32 v{vKbL}, v{T+1}, 8, v{vKbL}
    v_add_u32 v{vKbL}, 1024, v{vKbL}
    v_bfe_u32 v{T+2}, v1, 2, 2
    v_lshl_add_u32 v{T+2}, v{T+1}, 2, v{T+2}
    v_bfe_u32 v{T+3}, v1, 4, 1
    v_and_b32 v{T+4}, 3, v1
    v_lshl_add_u32 v{T+3}, v{T+3}, 2, v{T+4}
    v_lshl_add_u32 v{T+2}, v{T+3}, 2, v{T+2}
    v_lshlrev_b32 v{T+3}, 8, v{T+3}
    v_and_b32 v{T+4}, 31, v{T+2}
    v_lshl_add_u32 v{vVL}, v{T+4}, 3, v{T+3}
    v_add_u32 v{T+4}, 8, v{T+2}
    v_and_b32 v{T+4}, 31, v{T+4}
    v_lshl_add_u32 v{vVL+1}, v{T+4}, 3, v{T+3}
    v_add_u32 v{T+4}, 16, v{T+2}
    v_and_b32 v{T+4}, 31, v{T+4}
    v_lshl_add_u32 v{vVL+2}, v{T+4}, 3, v{T+3}
    v_add_u32 v{T+4}, 24, v{T+2}
    v_and_b32 v{T+4}, 31, v{T+4}
    v_lshl_add_u32 v{vVL+3}, v{T+4}, 3, v{T+3}
    s_waitcnt lgkmcnt(0)
    s_mov_b32 s8, s4
    s_mov_b32 s9, s5
    s_mov_b32 s10, {QKV_BYTES}
    s_mov_b32 s11, 0x00020000
    s_add_u32 s12, s4, {AP_OFF}
    s_addc_u32 s13, s5, 0
    s_mov_b32 s14, {AP_BYTES}
    s_mov_b32 s15, 0x00020000
    s_mul_i32 s{sQoff}, s{sHead}, {HEADB}
    s_lshl_b32 s26, s{sQb}, 2
    s_and_b32 s27, s{sWave}, 3
    s_add_u32 s26, s26, s27
    s_mul_i32 s26, s26, {64*48}
    s_add_u32 s{sQoff}, s{sQoff}, s26
    buffer_load_dwordx2 v[{QA[0]}:{QA[0]+1}], v{vKaL}, s[8:11], s{sQoff} offen
    buffer_load_dwordx2 v[{QA[0]+2}:{QA[0]+3}], v{vKaL}, s[8:11], s{sQoff} offen offset:256
    buffer_load_dwordx2 v[{QA[0]+4}:{QA[0]+5}], v{vKbL}, s[8:11], s{sQoff} offen
    buffer_load_dwordx2 v[{QA[1]}:{QA[1]+1}], v{vKaL}, s[8:11], s{sQoff} offen offset:1536
    buffer_load_dwordx2 v[{QA[1]+2}:{QA[1]+3}], v{vKaL}, s[8:11], s{sQoff} offen offset:1792
    buffer_load_dwordx2 v[{QA[1]+4}:{QA[1]+5}], v{vKbL}, s[8:11], s{sQoff} offen offset:1536
    s_add_u32 s26, s{sHead}, 32
    s_mul_i32 s{sKbase}, s26, {HEADB}
    s_lshr_b32 s26, s{sWave}, 2
    s_mul_i32 s26, s26, {32*HEADB}
    s_add_u32 s{sSrc}, s{sKbase}, s26
    s_bfe_u32 s26, s{sWave}, 0x10001
    s_mul_i32 s26, s26, {1024*48}
    s_add_u32 s{sSrc}, s{sSrc}, s26
    s_and_b32 s26, s{sWave}, 1
    s_mul_i32 s26, s26, 3072
    s_add_u32 s{sSrc}, s{sSrc}, s26
    s_mov_b32 s{sPass}, 0
    s_mov_b32 s30, 0x07060302
    """)
    def setshift(q):
        a(f"""
        v_mov_b32 v{T+1}, v{T}
        s_nop 1
        v_permlane32_swap_b32 v{T}, v{T+1}
        s_nop 1
        v_max_f32 v{T}, v{T}, v{T+1}
        v_sub_f32 v{T}, 0, v{T}
        v_and_b32 v{T+1}, 0xffff0000, v{T}
        v_sub_f32 v{T+2}, v{T}, v{T+1}
        v_perm_b32 v{T+2}, v{T+2}, v{T+1}, s30
        v_cmp_gt_u32 vcc, 32, v1
        s_nop 1
        v_cndmask_b32 v{q+4}, v{T+2}, v{q+4}, vcc
        """)
    def dma(step_s, buf_s):
        a(f"""
        s_mul_i32 s26, s{sWave}, 3072
        s_add_u32 s26, s26, {buf_s}
        s_mov_b32 m0, s26
        s_mul_i32 s27, {step_s}, {REGB}
        s_add_u32 s27, s27, s{sSrc}
        buffer_load_dwordx4 v{vDMA}, s[8:11], s27 offen lds
        buffer_load_dwordx4 v{vDMA}, s[8:11], s27 offen offset:1024 lds
        buffer_load_dwordx4 v{vDMA}, s[8:11], s27 offen offset:2048 lds
        """)
    def qk(S, q):
        a(f"{MF} v[{S}:{S+15}], v[{Kf0}:{Kf0+3}], v[{q}:{q+3}], 0")
        a(f"{MF} v[{S}:{S+15}], v[{Kf1}:{Kf1+3}], v[{q+4}:{q+7}], v[{S}:{S+15}]")
    def vreads1(addr, tile, j):
        for e2 in range(2):
            a(f"ds_read_b64_tr_b16 v[{Vf+4*j+2*e2}:{Vf+4*j+2*e2+1}], v{addr+2*j+e2} offset:{tile*1536}")
    def kreads(a0, a1, tile):
        a(f"ds_read_b64 v[{Kf0}:{Kf0+1}], v{a0} offset:{tile*1536}")
        a(f"ds_read_b64 v[{Kf0+2}:{Kf0+3}], v{a0} offset:{tile*1536+256}")
        a(f"ds_read_b64 v[{Kf1}:{Kf1+1}], v{a1} offset:{tile*1536}")
    dma("0", "0")
    dma("1", str(BUFB))
    for i in range(32):
        a(f"v_mov_b32 v{OA[0]+i}, 0")
    a(f"""
    s_mul_i32 s26, s{sHalf}, {REGB}
    v_add_u32 v{vKaC}, s26, v{vKaL}
    v_add_u32 v{vKbC}, s26, v{vKbL}
    s_add_u32 s27, s26, {2*REGB}
    v_add_u32 v{vVC}, s27, v{vVL}
    v_add_u32 v{vVC+1}, s27, v{vVL+1}
    v_add_u32 v{vVC+2}, s27, v{vVL+2}
    v_add_u32 v{vVC+3}, s27, v{vVL+3}
    v_add_u32 v{vKaN}, {BUFB}, v{vKaC}
    v_add_u32 v{vKbN}, {BUFB}, v{vKbC}
    v_add_u32 v{vVN}, {BUFB}, v{vVC}
    v_add_u32 v{vVN+1}, {BUFB}, v{vVC+1}
    v_add_u32 v{vVN+2}, {BUFB}, v{vVC+2}
    v_add_u32 v{vVN+3}, {BUFB}, v{vVC+3}
    v_mov_b32 v{Kf1+2}, 0
    v_mov_b32 v{Kf1+3}, 0
    s_mov_b32 s{sBufN}, {BUFB}
    s_mov_b32 s{sBufD}, {2*BUFB}
    s_mov_b32 s{sCh}, 0
    s_waitcnt vmcnt(6)
    v_cmp_gt_u32 vcc, 32, v1
    """)
    for q in QA:
        a(f"""
        v_mov_b32 v{q+6}, 0
        v_mov_b32 v{q+7}, 0
        v_cndmask_b32 v{q+4}, 0, v{q+4}, vcc
        v_cndmask_b32 v{q+5}, 0, v{q+5}, vcc
        """)
    a(f"""
    s_waitcnt vmcnt(3)
    s_barrier
    """)
    kreads(vKaL, vKbL, 0)
    a("s_waitcnt lgkmcnt(0)")
    qk(SA, QA[0]); qk(SB, QA[1])
    kreads(vKaC, vKbC, 0)
    a("s_nop 15")
    for S, q in ((SA, QA[0]), (SB, QA[1])):
        a(f"v_max3_f32 v{T}, v{S}, v{S+1}, v{S+2}")
        for i in range(3, 15, 2):
            a(f"v_max3_f32 v{T}, v{T}, v{S+i}, v{S+i+1}")
        a(f"v_max_f32 v{T}, v{T}, v{S+15}")
        setshift(q)
    a("s_waitcnt lgkmcnt(0)")
    a("s_nop 1")
    qk(SA, QA[0])
    vreads1(vVC, 0, 1)
    vreads1(vVC, 0, 0)
    for i in range(4, 8):
        a(f"v_mov_b32 v{P+i}, 0")
    a("s_nop 7")
    if diag: a("s_memtime s[34:35]")
    a("L_k2_loop:")
    NJ = 2*TPS
    for j in range(NJ):
        t = j >> 1; qi = j & 1
        S = SA if j % 2 == 0 else SB
        N = SB if j % 2 == 0 else SA
        O = OA[qi]; Oprev = OA[1-qi]
        Qn = QA[1-qi]
        ex = lambda i: a(f"v_exp_f32 v{S+i}, v{S+i}")
        cv = lambda i: a(f"v_cvt_pk_bf16_f32 v{P+i}, v{S+2*i}, v{S+2*i+1}")
        if qi == 1:
            a("s_waitcnt lgkmcnt(2)")
        a(f"{MF} v[{N}:{N+15}], v[{Kf0}:{Kf0+3}], v[{Qn}:{Qn+3}], 0")
        for i in range(4): ex(i)
        a(f"{MF} v[{N}:{N+15}], v[{Kf1}:{Kf1+3}], v[{Qn+4}:{Qn+7}], v[{N}:{N+15}]")
        if qi == 0:
            if t == TPS-1:
                lab = "L_k2_nodma"
                a(f"""
                s_waitcnt vmcnt(0)
                s_barrier
                s_add_u32 s28, s{sCh}, 2
                s_cmp_ge_u32 s28, {NSTEP}
                s_cbranch_scc1 {lab}
                """)
                dma("s28", f"s{sBufD}")
                a(f"{lab}:")
                kreads(vKaN, vKbN, 0)
            else:
                kreads(vKaC, vKbC, t+1)
        for i in range(4, 8): ex(i)
        cv(0); cv(1)
        if qi == 0:
            a("s_waitcnt lgkmcnt(5)")
        else:
            a("s_waitcnt lgkmcnt(0)")
        a(f"{MF} v[{Oprev}:{Oprev+15}], v[{Vf+4}:{Vf+7}], v[{P+4}:{P+7}], v[{Oprev}:{Oprev+15}]")
        if qi == 0:
            vreads1(vVC, t, 1)
        for i in range(8, 12): ex(i)
        cv(2); cv(3)
        if qi == 0:
            a("s_waitcnt lgkmcnt(5)")
            a("s_nop 0")
        else:
            a("s_nop 1")
        a(f"{MF} v[{O}:{O+15}], v[{Vf}:{Vf+3}], v[{P}:{P+3}], v[{O}:{O+15}]")
        if qi == 1:
            if t+1 < TPS:
                vreads1(vVC, t+1, 0)
            else:
                vreads1(vVN, 0, 0)
        for i in range(12, 16): ex(i)
        cv(4); cv(5); cv(6); cv(7)
    a(f"""
    v_mov_b32 v{vKaC}, v{vKaN}
    v_mov_b32 v{vKbC}, v{vKbN}
    v_mov_b32 v{vVC}, v{vVN}
    v_mov_b32 v{vVC+1}, v{vVN+1}
    v_mov_b32 v{vVC+2}, v{vVN+2}
    v_mov_b32 v{vVC+3}, v{vVN+3}
    s_mov_b32 s{sBufN}, s{sBufD}
    s_add_u32 s{sBufD}, s{sBufD}, {BUFB}
    s_cmp_ge_u32 s{sBufD}, {NBUF*BUFB}
    s_cselect_b32 s{sBufD}, 0, s{sBufD}
    s_mul_i32 s26, s{sHalf}, {REGB}
    s_add_u32 s26, s26, s{sBufN}
    v_add_u32 v{vKaN}, s26, v{vKaL}
    v_add_u32 v{vKbN}, s26, v{vKbL}
    s_add_u32 s26, s26, {2*REGB}
    v_add_u32 v{vVN}, s26, v{vVL}
    v_add_u32 v{vVN+1}, s26, v{vVL+1}
    v_add_u32 v{vVN+2}, s26, v{vVL+2}
    v_add_u32 v{vVN+3}, s26, v{vVL+3}
    s_add_u32 s{sCh}, s{sCh}, 1
    s_cmp_lt_u32 s{sCh}, {NSTEP}
    s_cbranch_scc1 L_k2_loop
    DIAG1
    s_waitcnt lgkmcnt(0)
    {MF} v[{OA[1]}:{OA[1]+15}], v[{Vf+4}:{Vf+7}], v[{P+4}:{P+7}], v[{OA[1]}:{OA[1]+15}]
    s_mul_i32 s26, s{sWave}, 3072
    s_add_u32 s26, s26, {MERGE_OFF}
    v_add_u32 v{T}, s26, v{vDMA}
    s_xor_b32 s27, s{sWave}, 4
    s_mul_i32 s27, s27, 3072
    s_add_u32 s27, s27, {MERGE_OFF}
    v_add_u32 v{T+1}, s27, v{vDMA}
    s_nop 15
    s_cmp_eq_u32 s{sHalf}, 0
    s_cbranch_scc1 L_k2_h0
    """)
    for i in range(3):
        a(f"ds_write_b128 v{T}, v[{OA[0]+4*i}:{OA[0]+4*i+3}] offset:{1024*i}")
    a("s_waitcnt lgkmcnt(0)")
    for i in range(12):
        a(f"v_mov_b32 v{OA[0]+i}, v{OA[1]+i}")
    for i in range(8):
        a(f"v_mov_b32 v{QA[0]+i}, v{QA[1]+i}")
    a("s_branch L_k2_merge")
    a("L_k2_h0:")
    for i in range(3):
        a(f"ds_write_b128 v{T}, v[{OA[1]+4*i}:{OA[1]+4*i+3}] offset:{1024*i}")
    a("s_waitcnt lgkmcnt(0)")
    a("L_k2_merge:")
    a("s_barrier")
    O = OA[0]; Q0 = QA[0]; Q1 = QA[0]+4
    for i in range(3):
        a(f"ds_read_b128 v[{OA[1]+4*i}:{OA[1]+4*i+3}], v{T+1} offset:{1024*i}")
    a("s_waitcnt lgkmcnt(0)")
    for i in range(12):
        a(f"v_add_f32 v{O+i}, v{O+i}, v{OA[1]+i}")
    a(f"""
    L_k2_getl:
    v_mov_b32 v{T}, v{O+8}
    v_mov_b32 v{T+1}, v{O+8}
    s_nop 1
    v_permlane32_swap_b32 v{T}, v{T+1}
    s_nop 1
    s_cmp_lg_u32 s{sPass}, 0
    s_cbranch_scc1 L_k2_store
    v_mov_b32 v{T+2}, 0x5f800000
    v_cmp_nle_f32 vcc, v{T+1}, v{T+2}
    s_cmp_eq_u64 vcc, 0
    s_cbranch_scc1 L_k2_store
    s_mov_b32 s{sPass}, 1
    v_cmp_gt_u32 vcc, 32, v1
    s_nop 1
    v_cndmask_b32 v{Q1}, 0, v{Q1}, vcc
    v_mov_b32 v{T}, 0xff800000
    s_mov_b32 s26, 0
    L_k2_maxloop:
    s_mul_i32 s27, s26, 1536
    s_add_u32 s27, s27, s{sKbase}
    buffer_load_dwordx2 v[{Kf0}:{Kf0+1}], v{vKaL}, s[8:11], s27 offen
    buffer_load_dwordx2 v[{Kf0+2}:{Kf0+3}], v{vKaL}, s[8:11], s27 offen offset:256
    buffer_load_dwordx2 v[{Kf1}:{Kf1+1}], v{vKbL}, s[8:11], s27 offen
    s_waitcnt vmcnt(0)
    """)
    qk(SA, Q0)
    a("s_nop 15\ns_nop 3")
    for i in range(0, 16, 2):
        a(f"v_max3_f32 v{T}, v{T}, v{SA+i}, v{SA+i+1}")
    a(f"""
    s_add_u32 s26, s26, 1
    s_cmp_lt_u32 s26, 64
    s_cbranch_scc1 L_k2_maxloop
    """)
    setshift(Q0)
    for i in range(16):
        a(f"v_mov_b32 v{O+i}, 0")
    a(f"""
    s_mul_i32 s28, s{sWave}, 3072
    s_add_u32 s28, s28, {SCR_OFF}
    v_add_u32 v{vVC}, s28, v{vVL}
    v_add_u32 v{vVC+1}, s28, v{vVL+1}
    v_add_u32 v{vVC+2}, s28, v{vVL+2}
    v_add_u32 v{vVC+3}, s28, v{vVL+3}
    s_mov_b32 s26, 0
    L_k2_slowloop:
    s_mov_b32 m0, s28
    s_mul_i32 s27, s26, 3072
    s_add_u32 s27, s27, s{sKbase}
    s_add_u32 s29, s27, {32*HEADB}
    buffer_load_dwordx4 v{vDMA}, s[8:11], s29 offen lds
    buffer_load_dwordx4 v{vDMA}, s[8:11], s29 offen offset:1024 lds
    buffer_load_dwordx4 v{vDMA}, s[8:11], s29 offen offset:2048 lds
    """)
    for tt in range(2):
        a(f"""
        buffer_load_dwordx2 v[{Kf0}:{Kf0+1}], v{vKaL}, s[8:11], s27 offen offset:{tt*1536}
        buffer_load_dwordx2 v[{Kf0+2}:{Kf0+3}], v{vKaL}, s[8:11], s27 offen offset:{tt*1536+256}
        buffer_load_dwordx2 v[{Kf1}:{Kf1+1}], v{vKbL}, s[8:11], s27 offen offset:{tt*1536}
        s_waitcnt vmcnt(0)
        """)
        qk(SA, Q0)
        vreads1(vVC, tt, 0); vreads1(vVC, tt, 1)
        a("s_nop 15")
        for i in range(16):
            a(f"v_exp_f32 v{SA+i}, v{SA+i}")
        a("s_nop 0")
        for i in range(8):
            a(f"v_cvt_pk_bf16_f32 v{P+i}, v{SA+2*i}, v{SA+2*i+1}")
        a(f"""
        s_waitcnt lgkmcnt(0)
        s_nop 1
        {MF} v[{O}:{O+15}], v[{Vf}:{Vf+3}], v[{P}:{P+3}], v[{O}:{O+15}]
        {MF} v[{O}:{O+15}], v[{Vf+4}:{Vf+7}], v[{P+4}:{P+7}], v[{O}:{O+15}]
        s_nop 7
        """)
    a(f"""
    s_add_u32 s26, s26, 1
    s_cmp_lt_u32 s26, 32
    s_cbranch_scc1 L_k2_slowloop
    s_nop 15
    s_branch L_k2_getl
    L_k2_store:
    v_rcp_f32 v{T+1}, v{T+1}
    s_lshl_b32 s26, s{sQb}, 3
    s_and_b32 s27, s{sWave}, 3
    s_lshl_b32 s27, s27, 1
    s_add_u32 s26, s26, s27
    s_add_u32 s26, s26, s{sHalf}
    s_lshl_b32 s26, s26, 5
    v_and_b32 v{T+2}, 31, v1
    v_add_u32 v{T+2}, s26, v{T+2}
    v_lshrrev_b32 v{T+3}, 4, v{T+2}
    v_mul_u32_u24 v{T+3}, {68*1024}, v{T+3}
    v_and_b32 v{T+2}, 15, v{T+2}
    v_lshl_add_u32 v{T+2}, v{T+2}, 4, v{T+3}
    v_lshrrev_b32 v{T+3}, 5, v1
    s_mul_i32 s27, s{sHead}, 5
    v_add_u32 v{T+3}, s27, v{T+3}
    """)
    for i in range(12):
        a(f"v_mul_f32 v{O+i}, v{O+i}, v{T+1}")
    for i in range(3):
        a(f"""
        v_add_u32 v{T+4}, {2*i}, v{T+3}
        v_lshrrev_b32 v{T+5}, 3, v{T+4}
        v_lshlrev_b32 v{T+5}, 10, v{T+5}
        v_and_b32 v{T+6}, 3, v{T+4}
        v_lshl_add_u32 v{T+5}, v{T+6}, 8, v{T+5}
        v_bfe_u32 v{T+6}, v{T+4}, 2, 1
        v_lshl_add_u32 v{T+5}, v{T+6}, 3, v{T+5}
        v_add_u32 v{T+5}, v{T+5}, v{T+2}
        v_cvt_pk_bf16_f32 v{T+8}, v{O+4*i}, v{O+4*i+1}
        v_cvt_pk_bf16_f32 v{T+9}, v{O+4*i+2}, v{O+4*i+3}
        """)
        if i == 2:
            a(f"""
            v_cmp_gt_u32 vcc, 32, v1
            v_mov_b32 v{T+6}, 0x7ffffff0
            s_nop 0
            v_cndmask_b32 v{T+5}, v{T+6}, v{T+5}, vcc
            """)
        a(f"buffer_store_dwordx2 v[{T+8}:{T+9}], v{T+5}, s[12:15], 0 offen")
        a("s_nop 1")
    if diag:
        a(f"""
        s_waitcnt vmcnt(0)
        s_memtime s[38:39]
        s_memrealtime s[42:43]
        s_waitcnt lgkmcnt(0)
        s_sub_u32 s34, s34, s32
        s_sub_u32 s36, s36, s32
        s_sub_u32 s38, s38, s32
        s_sub_u32 s42, s42, s40
        s_add_u32 s44, s4, 0x2000000
        s_addc_u32 s45, s5, 0
        s_mov_b32 s46, 0x100000
        s_mov_b32 s47, 0x00020000
        s_lshl_b32 s26, s2, 3
        s_add_u32 s26, s26, s{sWave}
        s_lshl_b32 s26, s26, 4
        v_mov_b32 v{T}, s26
        v_mov_b32 v{T+4}, s34
        v_mov_b32 v{T+5}, s36
        v_mov_b32 v{T+6}, s38
        v_mov_b32 v{T+7}, s42
        buffer_store_dwordx4 v[{T+4}:{T+7}], v{T}, s[44:47], 0 offen
        """)
    a("""
    L_k2_end:
    s_endpgm
    """)
    txt = a.text()
    txt = txt.replace("    DIAG0\n", "    s_memtime s[32:33]\n    s_memrealtime s[40:41]\n" if diag else "")
    txt = txt.replace("    DIAG1\n", "    s_memtime s[36:37]\n" if diag else "")
    return txt, kernel_desc(name, 140, 64)
```

```python
from asmlib import *
from k2 import AP_OFF, AP_BYTES
from k1 import VmTrack

WB = 5120
NWB = 4
PSTR = 336
WREG = 64*PSTR
K3_LDS = 4*WREG

def gen_k3(name="out_kernel", diag=False, KT=68, X=()):
    NK = KT//4
    a = Asm()
    a.lines.append(kernel_header(name).rstrip("\n"))
    vWD = 2
    vA = 7
    vR = 11
    T = 12
    Wf = 20
    Af = 60
    ACC = 108
    sWave, sRb, sCg, sK0, sAoff, sLds = 40, 41, 42, 43, 44, 45
    MF = "v_mfma_f32_16x16x32_bf16"
    a(f"""
    s_cmp_ge_u32 s2, 256
    s_cbranch_scc1 L_k3_end
    s_load_dwordx2 s[4:5], s[0:1], 16
    s_load_dwordx4 s[20:23], s[0:1], 48
    s_load_dwordx2 s[6:7], s[0:1], 80
    s_load_dwordx2 s[24:25], s[0:1], 0
    s_load_dwordx2 s[26:27], s[0:1], 64
    DIAG0
    v_and_b32 v1, 63, v0
    v_lshrrev_b32 v{T}, 6, v0
    s_and_b32 s28, s2, 7
    s_lshr_b32 s29, s2, 3
    v_readfirstlane_b32 s{sWave}, v{T}
    s_lshl_b32 s28, s28, 2
    s_and_b32 s30, s29, 3
    s_add_u32 s{sRb}, s28, s30
    s_lshr_b32 s{sCg}, s29, 2
    s_mul_i32 s{sK0}, s{sWave}, {NK}
    s_mul_i32 s{sLds}, s{sWave}, {WREG}
    """)
    for i in range(5):
        a(f"""
        v_add_u32 v{T}, {64*i}, v1
        v_mul_u32_u24 v{T+1}, 0xcccd, v{T}
        v_lshrrev_b32 v{T+1}, 19, v{T+1}
        v_mul_u32_u24 v{T+2}, 10, v{T+1}
        v_sub_u32 v{T}, v{T}, v{T+2}
        v_mul_u32_u24 v{T+1}, 1280, v{T+1}
        v_lshl_add_u32 v{vWD+i}, v{T}, 4, v{T+1}
        """)
        if i and i < 4: a(f"v_subrev_u32 v{vWD+i}, {1024*i}, v{vWD+i}")
    a(f"""
    v_lshlrev_b32 v{vA}, 4, v1
    v_add_u32 v{vA+1}, {69632}, v{vA}
    v_add_u32 v{vA+2}, {2*69632}, v{vA}
    v_add_u32 v{vA+3}, {3*69632}, v{vA}
    s_mul_i32 s{sAoff}, s{sRb}, {4*69632}
    s_lshl_b32 s28, s{sK0}, 10
    s_add_u32 s{sAoff}, s{sAoff}, s28
    v_lshrrev_b32 v{T}, 2, v1
    v_mul_u32_u24 v{vR}, 160, v{T}
    v_and_b32 v{T}, 3, v1
    v_lshl_add_u32 v{vR}, v{T}, 3, v{vR}
    v_add_u32 v{vR}, s{sLds}, v{vR}
    s_mul_i32 s46, s{sCg}, 160
    s_waitcnt lgkmcnt(0)
    s_mov_b32 s11, 0x00020000
    s_add_u32 s12, s6, {AP_OFF}
    s_addc_u32 s13, s7, 0
    s_mov_b32 s14, {AP_BYTES}
    s_mov_b32 s15, 0x00020000
    s_mov_b32 s28, s24
    s_mov_b32 s29, s25
    s_mov_b32 s30, {2048*1280}
    s_mov_b32 s31, 0x00020000
    s_mov_b32 s32, s26
    s_mov_b32 s33, s27
    s_mov_b32 s34, {2048*1280}
    s_mov_b32 s35, 0x00020000
    s_mov_b32 s36, s22
    s_mov_b32 s37, s23
    s_mov_b32 s38, 1280
    s_mov_b32 s39, 0x00020000
    s_mov_b32 s48, {640*1280}
    """)
    vm = VmTrack()
    def wdma(i):
        L = [f"s_add_u32 s47, s{sK0}, {i}",
             f"s_cmp_lt_u32 s47, 20",
             f"s_cselect_b32 s8, s4, s20",
             f"s_cselect_b32 s9, s5, s21",
             f"s_cselect_b32 s10, s48, {1536*1280}",
             f"s_cselect_b32 s49, 0, 20",
             f"s_sub_u32 s47, s47, s49",
             f"s_mul_i32 s47, s47, {32*1280}",
             f"s_add_u32 s49, s{sLds}, {(i % NWB)*WB}",
             f"s_mov_b32 m0, s49",
             f"s_add_u32 s47, s47, s46"]
        L += [f"buffer_load_dwordx4 v{vWD+j}, s[8:11], s47 offen offset:{j*1024} lds" for j in range(4)]
        L += [f"s_add_u32 s49, s49, 4096", f"s_mov_b32 m0, s49", "s_nop 0", f"buffer_load_dwordx4 v{vWD+4}, s[8:11], s47 offen lds"]
        return L
    def aload(i):
        L = []
        if i % 4 == 0 and i > 0:
            L.append(f"s_add_u32 s{sAoff}, s{sAoff}, 4096")
        for rt in range(4):
            r = Af + (i % 3)*16 + rt*4
            L.append(f"buffer_load_dwordx4 v[{r}:{r+3}], v{vA+rt}, s[12:15], s{sAoff} offen offset:{(i % 4)*1024}")
        return L
    def emit(L, tag):
        for l in L:
            a(l)
            if l.startswith("buffer_load"): vm.issue(tag)
    def wreads(i):
        L = []
        for t in range(5):
            for hf in range(2):
                r = Wf + (i & 1)*20 + t*4 + hf*2
                L.append(f"ds_read_b64_tr_b16 v[{r}:{r+1}], v{vR} offset:{(i % NWB)*WB + hf*2560 + t*32}")
        return L
    emit(wdma(0), ("w", 0)); emit(aload(0), ("a", 0))
    emit(wdma(1), ("w", 1)); emit(aload(1), ("a", 1))
    emit(wdma(2), ("w", 2))
    for i in range(80): a(f"v_mov_b32 v{ACC+i}, 0")
    n = vm.wait_for(("w", 0))
    a(f"s_waitcnt vmcnt({n})")
    for l in wreads(0): a(l)
    if diag: a("s_memtime s[54:55]")
    for i in range(NK):
        n1 = vm.wait_for(("a", i))
        if i+1 < NK:
            n1 = vm.wait_for(("w", i+1))
        a(f"s_waitcnt vmcnt({n1}) lgkmcnt(0)")
        rd = wreads(i+1) if i+1 < NK else []
        al = aload(i+2) if i+2 < NK else []
        wd = wdma(i+3) if i+3 < NK else []
        wb = Wf + (i & 1)*20; ab = Af + (i % 3)*16
        mf = []
        for t in range(5):
            for rt in range(4):
                c = ACC + (t*4+rt)*4
                mf.append(f"{MF} v[{c}:{c+3}], v[{wb+t*4}:{wb+t*4+3}], v[{ab+rt*4}:{ab+rt*4+3}], v[{c}:{c+3}]")
        slots = [[] for _ in range(20)]
        for j, l in enumerate(al): slots[j//2].append((l, ("a", i+2)))
        for j, l in enumerate(wd): slots[3 + j//2].append((l, ("w", i+3)))
        for j, l in enumerate(rd): slots[j].append((l, None))
        for j in range(20):
            a(mf[j])
            for l, tag in slots[j]:
                a(l)
                if l.startswith("buffer_load"): vm.issue(tag)
    a("DIAG1")
    a(f"""
    v_and_b32 v{T}, 15, v1
    v_mul_u32_u24 v{T}, {PSTR}, v{T}
    v_lshrrev_b32 v{T+1}, 4, v1
    v_lshl_add_u32 v{T}, v{T+1}, 4, v{T}
    v_add_u32 v{T}, s{sLds}, v{T}
    """)
    XI = Wf
    BI = Wf + 10
    OFF = Wf + 20
    LA = Wf + 25
    for j in range(5):
        a(f"""
        v_add_u32 v{T+2}, {256*j}, v0
        v_mul_u32_u24 v{T+3}, 0xcccd, v{T+2}
        v_lshrrev_b32 v{T+3}, 20, v{T+3}
        v_mul_u32_u24 v{T+4}, 20, v{T+3}
        v_sub_u32 v{T+2}, v{T+2}, v{T+4}
        v_mul_u32_u24 v{LA+j}, {PSTR}, v{T+3}
        v_lshl_add_u32 v{LA+j}, v{T+2}, 4, v{LA+j}
        s_lshl_b32 s47, s{sRb}, 6
        v_add_u32 v{T+3}, s47, v{T+3}
        v_mul_u32_u24 v{OFF+j}, 1280, v{T+3}
        v_lshl_add_u32 v{T+2}, v{T+2}, 3, s46
        v_add_u32 v{OFF+j}, v{OFF+j}, v{T+2}
        buffer_load_dwordx2 v[{XI+2*j}:{XI+2*j+1}], v{OFF+j}, s[28:31], 0 offen
        buffer_load_dwordx2 v[{BI+2*j}:{BI+2*j+1}], v{T+2}, s[36:39], 0 offen
        """)
    for t in range(5):
        for rt in range(4):
            c = ACC + (t*4+rt)*4
            a(f"ds_write_b128 v{T}, v[{c}:{c+3}] offset:{rt*16*PSTR + t*64}")
    a("s_waitcnt lgkmcnt(0)\ns_barrier")
    PR = ACC
    for j in range(5):
        for w in range(4):
            r = PR + (j*4+w)*4
            a(f"ds_read_b128 v[{r}:{r+3}], v{LA+j} offset:{w*WREG}")
    a("s_waitcnt vmcnt(0)")
    for j in range(5):
        r = PR + j*16
        a(f"s_waitcnt lgkmcnt({min(15, 4*(4-j))})")
        for h in range(2):
            a(f"v_pk_add_f32 v[{r+2*h}:{r+2*h+1}], v[{r+2*h}:{r+2*h+1}], v[{r+4+2*h}:{r+4+2*h+1}]")
            a(f"v_pk_add_f32 v[{r+8+2*h}:{r+8+2*h+1}], v[{r+8+2*h}:{r+8+2*h+1}], v[{r+12+2*h}:{r+12+2*h+1}]")
        for h in range(2):
            a(f"v_pk_add_f32 v[{r+2*h}:{r+2*h+1}], v[{r+2*h}:{r+2*h+1}], v[{r+8+2*h}:{r+8+2*h+1}]")
        for h in range(2):
            a(f"""
            v_lshlrev_b32 v{r+4+2*h}, 16, v{XI+2*j+h}
            v_and_b32 v{r+5+2*h}, 0xffff0000, v{XI+2*j+h}
            v_lshlrev_b32 v{r+8+2*h}, 16, v{BI+2*j+h}
            v_and_b32 v{r+9+2*h}, 0xffff0000, v{BI+2*j+h}
            """)
        for h in range(2):
            a(f"v_pk_add_f32 v[{r+2*h}:{r+2*h+1}], v[{r+2*h}:{r+2*h+1}], v[{r+8+2*h}:{r+8+2*h+1}]")
        for h in range(2):
            a(f"v_pk_add_f32 v[{r+2*h}:{r+2*h+1}], v[{r+2*h}:{r+2*h+1}], v[{r+4+2*h}:{r+4+2*h+1}]")
        a(f"""
        v_cvt_pk_bf16_f32 v{r+12}, v{r}, v{r+1}
        v_cvt_pk_bf16_f32 v{r+13}, v{r+2}, v{r+3}
        buffer_store_dwordx2 v[{r+12}:{r+13}], v{OFF+j}, s[32:35], 0 offen
        """)
    if diag:
        a(f"""
        s_waitcnt vmcnt(0)
        s_memtime s[58:59]
        s_memrealtime s[60:61]
        s_waitcnt lgkmcnt(0)
        s_sub_u32 s54, s54, s52
        s_sub_u32 s56, s56, s52
        s_sub_u32 s58, s58, s52
        s_sub_u32 s60, s60, s62
        s_add_u32 s64, s6, 0x2000000
        s_addc_u32 s65, s7, 0
        s_mov_b32 s66, 0x100000
        s_mov_b32 s67, 0x00020000
        s_lshl_b32 s47, s2, 3
        s_add_u32 s47, s47, s{sWave}
        s_lshl_b32 s47, s47, 4
        v_mov_b32 v{T}, s47
        v_mov_b32 v{T+4}, s54
        v_mov_b32 v{T+5}, s56
        v_mov_b32 v{T+6}, s58
        v_mov_b32 v{T+7}, s60
        buffer_store_dwordx4 v[{T+4}:{T+7}], v{T}, s[64:67], 0 offen
        """)
    a("""
    L_k3_end:
    s_endpgm
    """)
    txt = a.text()
    txt = txt.replace("    DIAG0\n", "    s_memtime s[52:53]\n    s_memrealtime s[62:63]\n" if diag else "")
    txt = txt.replace("    DIAG1\n", "    s_memtime s[56:57]\n" if diag else "")
    return txt, kernel_desc(name, 192, 96)
```

```python
from build import build
import k1, k2, k3, sys
def mk(path, diag=(False, False, False), only=None):
    t1, d1 = k1.gen_k1(diag=diag[0]); t2, d2 = k2.gen_k2(diag=diag[1]); t3, d3 = k3.gen_k3(diag=diag[2])
    ks = [("qkv_kernel", 256, 512, k1.K1_LDS, t1, d1), ("attn_kernel", 256, 768, k2.K2_LDS, t2, d2), ("out_kernel", 256, 256, k3.K3_LDS, t3, d3)]
    if only is not None: ks = [ks[i] for i in only]
    build(ks, path)
mk("parallel_sum__mha_block__mixer_channel_mlp__prompt.s")
mk("all_d3.s", diag=(False, False, True))
mk("all_d2.s", diag=(False, True, False))
```

```python
from asmlib import *
import math
from k2 import QKV_BYTES, AP_OFF, AP_LD, AP_BYTES, HEADB

WSTG = 16384
XSTG = 8192
STG = WSTG + XSTG
NSTG = 6
STAT_OFF = NSTG*STG
K1_LDS = STAT_OFF + 1024 + 1024
CS = math.log2(math.e)/math.sqrt(20.0)

class VmTrack:
    def __init__(self): self.q = []
    def issue(self, tag, n=1):
        for _ in range(n): self.q.append(tag)
    def wait_for(self, tag):
        ids = [i for i, t in enumerate(self.q) if t == tag]
        if not ids: return min(63, len(self.q))
        idx = max(ids)
        n = len(self.q) - 1 - idx
        self.q = self.q[idx+1:]
        return n

def gen_k1(name="qkv_kernel", diag=False, mimic=True, X=()):
    a = Asm()
    a.lines.append(kernel_header(name).rstrip("\n"))
    vWD = 2
    vXD = 4
    vAD = [6, 184]
    T = 18
    Wf = 24
    Xf = 80
    U = 96
    ACC = 128
    E = 194
    aRS, aRQ, aCS, aONE = 200, 204, 208, 216
    aB1 = 220
    sWave, sWm, sWn, sRb, sCg, sCol, sLd, sIsMlp, sXsrc, sWsrc, sWstep = 16, 17, 18, 19, 20, 21, 22, 23, 24, 25, 26
    sM0w, sM0x = 56, 57
    MF = "v_mfma_f32_16x16x32_bf16"
    a(f"""
    s_cmp_ge_u32 s2, 256
    s_cbranch_scc1 L_k1_end
    s_load_dwordx4 s[4:7], s[0:1], 0
    s_load_dwordx4 s[36:39], s[0:1], 32
    s_load_dwordx2 s[40:41], s[0:1], 80
    DIAG0
    v_and_b32 v1, 63, v0
    v_lshrrev_b32 v{T}, 6, v0
    s_and_b32 s28, s2, 7
    s_lshr_b32 s29, s2, 3
    v_readfirstlane_b32 s{sWave}, v{T}
    s_and_b32 s30, s28, 1
    s_lshl_b32 s30, s30, 3
    s_and_b32 s31, s29, 7
    s_add_u32 s{sRb}, s30, s31
    s_lshr_b32 s30, s28, 1
    s_lshl_b32 s30, s30, 2
    s_lshr_b32 s31, s29, 3
    s_add_u32 s{sCg}, s30, s31
    s_and_b32 s{sWm}, s{sWave}, 3
    s_lshr_b32 s{sWn}, s{sWave}, 2
    s_movk_i32 s{sLd}, 3840
    s_movk_i32 s31, 1696
    s_cmp_ge_u32 s{sCg}, 9
    s_cselect_b32 s{sIsMlp}, 1, 0
    s_cselect_b32 s{sLd}, 3072, s{sLd}
    s_cselect_b32 s30, 9, 0
    s_cselect_b32 s31, 1312, s31
    s_sub_u32 s30, s{sCg}, s30
    s_mul_i32 s{sCol}, s30, 224
    s_min_u32 s{sCol}, s{sCol}, s31
    s_movk_i32 s67, 0x78
    v_lshrrev_b32 v{T}, 2, v1
    v_lshrrev_b32 v{T+1}, 4, v1
    v_lshlrev_b32 v{E}, 1, v{T+1}
    v_lshrrev_b32_e64 v{E}, v{E}, s67
    v_xor_b32 v{E}, v{E}, v1
    v_and_b32 v{E}, 3, v{E}
    v_mul_u32_u24 v{vXD}, 1280, v{T}
    v_lshl_add_u32 v{vXD}, v{E}, 4, v{vXD}
    s_lshl_b32 s28, s{sRb}, 3
    s_add_u32 s28, s28, s{sWave}
    s_mul_i32 s{sXsrc}, s28, {16*1280}
    s_lshl_b32 s{sM0x}, s{sWave}, 10
    s_add_u32 s{sM0x}, s{sM0x}, {WSTG}
    s_lshl_b32 s{sM0w}, s{sWave}, 11
    v_lshrrev_b32 v{T}, 5, v1
    s_and_b32 s28, s{sWave}, 3
    s_lshl_b32 s28, s28, 1
    v_add_u32 v{T+2}, s28, v{T}
    v_bfe_u32 v{E}, v1, 1, 4
    v_xor_b32 v{E}, v{E}, v{T+2}
    v_mul_lo_u32 v{vWD}, v{T}, s{sLd}
    v_lshl_add_u32 v{vWD}, v{E}, 5, v{vWD}
    v_and_b32 v{E+1}, 1, v1
    v_lshl_add_u32 v{vWD}, v{E+1}, 4, v{vWD}
    v_cmp_gt_u32 vcc, 14, v{E}
    v_mov_b32 v{E+1}, 0x7f000000
    s_lshl_b32 s29, s{sLd}, 2
    s_sub_u32 s29, s29, 1024
    v_cndmask_b32 v{vWD}, v{E+1}, v{vWD}, vcc
    s_and_b32 s28, s{sWave}, 1
    v_add_u32 v{vWD+1}, s29, v{vWD}
    s_lshl_b32 s28, s28, 1
    s_lshr_b32 s29, s{sWave}, 1
    s_lshl_b32 s29, s29, 3
    s_or_b32 s28, s28, s29
    s_mul_i32 s{sWsrc}, s28, s{sLd}
    s_lshl_b32 s29, s{sCol}, 1
    s_add_u32 s{sWsrc}, s{sWsrc}, s29
    s_lshl_b32 s{sWstep}, s{sLd}, 5
    s_waitcnt lgkmcnt(0)
    s_mov_b32 s8, s4
    s_mov_b32 s9, s5
    s_mov_b32 s10, {2048*1280}
    s_mov_b32 s11, 0x00020000
    s_cmp_lg_u32 s{sIsMlp}, 0
    s_cselect_b32 s12, s36, s6
    s_cselect_b32 s13, s37, s7
    s_mul_i32 s14, s{sLd}, 640
    s_mov_b32 s15, 0x00020000
    """)
    vm = VmTrack()
    def dma_stage(s):
        buf = (s % NSTG)*STG
        G1 = [f"s_add_u32 s58, s{sM0w}, {buf}", f"s_mov_b32 m0, s58", f"s_add_u32 s59, s{sXsrc}, {s*64}"]
        G1 += [f"buffer_load_dwordx4 v{vWD+i}, s[12:15], s{sWsrc} offen offset:{i*1024} lds" for i in range(2)]
        G2 = [f"s_add_u32 s58, s{sM0x}, {buf}", f"s_mov_b32 m0, s58", f"s_add_u32 s{sWsrc}, s{sWsrc}, s{sWstep}"]
        G2 += [f"buffer_load_dwordx4 v{vXD}, s[8:11], s59 offen lds"]
        return G1 + G2
    def emit_dma(L, s):
        for l in L:
            a(l)
            if l.endswith("lds"): vm.issue(("d", s))
    for s in range(NSTG-1):
        emit_dma(dma_stage(s), s)
    a(f"""
    s_mov_b32 s44, s40
    s_mov_b32 s45, s41
    s_mov_b32 s46, {QKV_BYTES}
    s_mov_b32 s47, 0x00020000
    s_add_u32 s48, s40, {AP_OFF}
    s_addc_u32 s49, s41, 0
    s_mov_b32 s50, {AP_BYTES}
    s_mov_b32 s51, 0x00020000
    s_mov_b32 s52, s38
    s_mov_b32 s53, s39
    s_mov_b32 s54, 3072
    s_mov_b32 s55, 0x00020000
    v_and_b32 v{T}, 15, v1
    v_bfe_u32 v{E}, v1, 2, 2
    v_lshlrev_b32 v{E}, 1, v{E}
    v_lshrrev_b32_e64 v{E}, v{E}, s67
    v_xor_b32 v{E}, v{E}, v{T+1}
    v_and_b32 v{E}, 3, v{E}
    v_lshlrev_b32 v{E}, 4, v{E}
    v_lshl_add_u32 v{E}, v{T}, 6, v{E}
    s_lshl_b32 s28, s{sWm}, 11
    s_add_u32 s28, s28, {WSTG}
    s_lshl_b32 s29, s{sWn}, 10
    s_add_u32 s30, s28, s29
    v_add_u32 v{vAD[0]+7}, s30, v{E}
    s_xor_b32 s29, s29, 1024
    s_add_u32 s30, s28, s29
    v_add_u32 v{vAD[0]+8}, s30, v{E}
    ;   lds row = (r&1) + 4*(q>>1) + 8*(r>>1) + 16*(q&1) (+2*hf) ; swizzle h = r + 4*(q&1)
    v_bfe_u32 v{E}, v1, 2, 1
    v_bfe_u32 v{E+1}, v1, 5, 1
    v_lshl_add_u32 v{E}, v{E+1}, 4, v{E}
    v_bfe_u32 v{E+1}, v1, 3, 1
    v_lshl_add_u32 v{E}, v{E+1}, 2, v{E}
    v_bfe_u32 v{E+1}, v1, 4, 1
    v_lshl_add_u32 v{E}, v{E+1}, 3, v{E}
    v_lshlrev_b32 v{E}, 9, v{E}
    v_bfe_u32 v{E+2}, v1, 2, 2
    v_lshl_add_u32 v{E+2}, v{E+1}, 2, v{E+2}
    v_lshl_add_u32 v{E}, v{E+2}, 5, v{E}
    v_and_b32 v{E+2}, 3, v1
    v_lshl_add_u32 v{E}, v{E+2}, 3, v{E}
    s_mul_i32 s28, s{sWn}, 7
    s_lshl_b32 s29, s{sWm}, 1
    """)
    for tt in range(7):
        a(f"""
        s_add_u32 s30, s29, {tt}
        s_cmp_ge_u32 s30, 7
        s_cselect_b32 s31, 7, 0
        s_sub_u32 s30, s30, s31
        s_add_u32 s{60+tt}, s30, s28
        s_lshl_b32 s30, s{60+tt}, 5
        v_xor_b32 v{vAD[0]+tt}, s30, v{E}
        """)
    for i in range(9):
        a(f"v_add_u32 v{vAD[1]+i}, {3*STG}, v{vAD[0]+i}")
    a(f"""
    s_lshl_b32 s28, s2, 4
    v_lshrrev_b32 v{E}, 4, v0
    v_add_u32 v{E}, s28, v{E}
    v_mul_u32_u24 v{E}, 1536, v{E}
    v_and_b32 v{E+1}, 15, v0
    v_lshl_add_u32 v{E}, v{E+1}, 4, v{E}
    v_add_u32 v{E}, {32*HEADB+1280}, v{E}
    v_cmp_gt_u32 vcc, 256, v0
    v_mov_b32 v{E+1}, 0x7f000000
    v_mov_b32 v{U}, 0x3f803f80
    v_cndmask_b32 v{E}, v{E+1}, v{E}, vcc
    v_mov_b32 v{U+1}, 0
    v_mov_b32 v{U+2}, 0x3f803f80
    v_mov_b32 v{U+3}, 0
    buffer_store_dwordx4 v[{U}:{U+3}], v{E}, s[44:47], 0 offen
    """)
    vm.issue(("p", 0), 1)
    for tt in range(7):
        a(f"""
        s_lshl_b32 s28, s{60+tt}, 4
        s_add_u32 s28, s28, s{sCol}
        s_lshl_b32 s28, s28, 1
        v_lshl_add_u32 v{E}, v{T+1}, 3, s28
        buffer_load_dwordx2 v[{aB1+2*tt}:{aB1+1+2*tt}], v{E}, s[52:55], 0 offen
        """)
        vm.issue(("b", 0))
    for i in range(56): a(f"v_mov_b32 v{ACC+i}, 0")
    for i in range(16): a(f"v_mov_b32 v{aRS+i}, 0")
    for i in range(4): a(f"v_mov_b32 v{aONE+i}, v{U}")
    def freads(kk):
        L = []
        st = kk % NSTG
        ad = vAD[st // 3]; ob = (st % 3)*STG
        for rt in range(2):
            r = Xf + (kk & 1)*8 + rt*4
            L.append(f"ds_read_b128 v[{r}:{r+3}], v{ad+7+rt} offset:{ob}")
        for tt in range(7):
            for hf in range(2):
                r = Wf + (kk & 1)*28 + tt*4 + hf*2
                L.append(f"ds_read_b64_tr_b16 v[{r}:{r+1}], v{ad+tt} offset:{ob + hf*1024}")
        return L
    n = vm.wait_for(("d", 0))
    a(f"s_waitcnt vmcnt({n})")
    a("s_barrier")
    for l in freads(0): a(l)
    if diag: a("s_memtime s[34:35]")
    for kk in range(20):
        xb = Xf + (kk & 1)*8; wb = Wf + (kk & 1)*28
        if kk < 19:
            n = vm.wait_for(("d", kk+1))
            a(f"s_waitcnt vmcnt({n}) lgkmcnt(0)")
            if "nobar" not in X: a("s_barrier")
        else:
            a("s_waitcnt lgkmcnt(0)")
        rd = freads(kk+1) if kk < 19 else []
        dm = dma_stage(kk+NSTG-1) if kk+NSTG-1 < 20 else []
        mf = []
        for tt in range(7):
            for rt in range(2):
                c = ACC + (tt*2+rt)*4
                mf.append(f"{MF} v[{c}:{c+3}], v[{wb+tt*4}:{wb+tt*4+3}], v[{xb+rt*4}:{xb+rt*4+3}], v[{c}:{c+3}]")
        if "nostats" not in X:
            mf.append(f"{MF} v[{aRS}:{aRS+3}], v[{aONE}:{aONE+3}], v[{xb}:{xb+3}], v[{aRS}:{aRS+3}]")
            mf.append(f"{MF} v[{aRQ}:{aRQ+3}], v[{xb}:{xb+3}], v[{xb}:{xb+3}], v[{aRQ}:{aRQ+3}]")
            for tt in range(2):
                mf.append(f"{MF} v[{aCS+4*tt}:{aCS+4*tt+3}], v[{wb+tt*4}:{wb+tt*4+3}], v[{aONE}:{aONE+3}], v[{aCS+4*tt}:{aCS+4*tt+3}]")
        if "nodma" in X: dm = []
        if "noreads" in X: rd = []
        nm = len(mf)
        slots = [[] for _ in range(nm)]
        for i, l in enumerate(rd): slots[i].append(l)
        for i, l in enumerate(dm): slots[min(nm-1, 6+i)].append(l)
        for i in range(nm):
            a(mf[i])
            emit_dma(slots[i], kk+NSTG-1)
    a("DIAG1")
    a(f"""
    v_and_b32 v{T}, 15, v1
    v_lshrrev_b32 v{T+1}, 4, v1
    s_lshl_b32 s28, s{sWm}, 1
    s_add_u32 s28, s28, s{sWn}
    s_lshl_b32 s28, s28, 7
    s_add_u32 s28, s28, {STAT_OFF}
    v_lshl_add_u32 v{E}, v{T}, 3, s28
    v_and_b32 v{E+1}, 3, v1
    v_bfe_u32 v{E+2}, v1, 2, 2
    s_nop 7
    """)
    for i in range(1, 4):
        a(f"""
        v_cmp_eq_u32 vcc, {i}, v{E+1}
        s_nop 1
        v_cndmask_b32 v{aRQ}, v{aRQ}, v{aRQ+i}, vcc
        """)
    a(f"""
    ds_write_b32 v{E}, v{aRS}
    v_cmp_eq_u32 vcc, v{E+2}, v{T+1}
    s_and_saveexec_b64 s[28:29], vcc
    ds_write_b32 v{E}, v{aRQ} offset:4
    s_mov_b64 exec, s[28:29]
    """)
    for tt in range(2):
        a(f"""
        s_lshl_b32 s28, s{60+tt}, 6
        s_add_u32 s28, s28, {STAT_OFF+1024}
        v_lshl_add_u32 v{E+1}, v{T+1}, 4, s28
        ds_write_b128 v{E+1}, v[{aCS+4*tt}:{aCS+4*tt+3}]
        """)
    a("s_waitcnt lgkmcnt(0)\ns_barrier")
    RW = Wf; CW = Wf + 8
    for rt in range(2):
        a(f"""
        s_add_u32 s28, s{sWn}, {rt}
        s_and_b32 s28, s28, 1
        s_lshl_b32 s29, s{sWm}, 1
        s_add_u32 s28, s28, s29
        s_lshl_b32 s28, s28, 7
        s_add_u32 s28, s28, {STAT_OFF}
        v_lshl_add_u32 v{E}, v{T}, 3, s28
        ds_read_b64 v[{RW+2*rt}:{RW+2*rt+1}], v{E}
        """)
    for tt in range(7):
        a(f"""
        s_lshl_b32 s28, s{60+tt}, 6
        s_add_u32 s28, s28, {STAT_OFF+1024}
        v_lshl_add_u32 v{E}, v{T+1}, 4, s28
        ds_read_b128 v[{CW+4*tt}:{CW+4*tt+3}], v{E}
        """)
    a("s_waitcnt lgkmcnt(0)")
    def bf16r(reg, tmp):
        a(f"""
        v_cvt_pk_bf16_f32 v{tmp}, v{reg}, v{reg}
        v_lshlrev_b32 v{reg}, 16, v{tmp}
        """)
    a(f"s_mov_b32 s28, {f32bits(1.0/640)}")
    a(f"s_mov_b32 s29, {f32bits(1e-5)}")
    for rt in range(2):
        m = RW+2*rt; v = RW+2*rt+1
        a(f"""
        v_mul_f32 v{m}, s28, v{m}
        v_mul_f32 v{v}, s28, v{v}
        v_fma_f32 v{v}, -v{m}, v{m}, v{v}
        v_max_f32 v{v}, 0, v{v}
        v_mov_b32 v{E}, v{m}
        v_mov_b32 v{E+1}, v{v}
        """)
        if mimic:
            bf16r(m, E+2); bf16r(v, E+2)
        a(f"v_add_f32 v{v}, s29, v{v}")
        if mimic: bf16r(v, E+2)
        a(f"v_sqrt_f32 v{v}, v{v}\ns_nop 0")
        if mimic: bf16r(v, E+2)
        a(f"""
        v_mov_b32 v{E+3}, v{v}
        v_rcp_f32 v{v}, v{v}
        s_cmp_eq_u32 s{sIsMlp}, 0
        s_cbranch_scc1 L_k1_rp{rt}
        v_sub_f32 v{E}, v{E}, v{m}
        v_mul_f32 v{E}, v{E}, v{v}
        v_mul_f32 v{E+1}, v{E+1}, v{v}
        v_mul_f32 v{E+1}, v{E+1}, v{v}
        """)
        if mimic:
            bf16r(E, E+2); bf16r(E+1, E+2)
        a(f"v_add_f32 v{E+1}, s29, v{E+1}")
        if mimic: bf16r(E+1, E+2)
        a(f"v_sqrt_f32 v{E+1}, v{E+1}\ns_nop 0")
        if mimic: bf16r(E+1, E+2)
        a(f"""
        v_rcp_f32 v{E+1}, v{E+1}
        v_fma_f32 v{m}, v{E}, v{E+3}, v{m}
        v_mul_f32 v{v}, v{v}, v{E+1}
        L_k1_rp{rt}:
        """)
    RO = Wf + 40; R32 = Wf + 44; SC = Wf + 48
    a(f"""
    s_cmp_lg_u32 s{sIsMlp}, 0
    s_cbranch_scc1 L_k1_mlp
    """)
    def rowtile_s28(rt):
        a(f"""
        s_add_u32 s28, s{sWn}, {rt}
        s_and_b32 s28, s28, 1
        s_lshl_b32 s29, s{sWm}, 1
        s_add_u32 s28, s28, s29
        s_lshl_b32 s29, s{sRb}, 3
        s_add_u32 s28, s28, s29
        """)
    for rt in range(2):
        rowtile_s28(rt)
        a(f"""
        s_lshr_b32 s29, s28, 1
        s_mul_i32 s29, s29, 1536
        v_mov_b32 v{RO+rt}, s29
        s_and_b32 s28, s28, 1
        s_lshl_b32 s28, s28, 4
        v_add_u32 v{R32+rt}, s28, v{T}
        """)
    BC = "op_sel_hi:[0,1,1]"
    for tt in range(7):
        a(f"""
        s_lshl_b32 s28, s{60+tt}, 4
        s_add_u32 s28, s28, s{sCol}
        s_cmp_lt_u32 s28, 640
        s_cselect_b32 s29, {f32bits(CS)}, 1.0
        s_lshr_b32 s28, s28, 2
        v_add_u32 v{E}, s28, v{T+1}
        v_mul_u32_u24 v{E+1}, 0xcccd, v{E}
        v_lshrrev_b32 v{E+1}, 18, v{E+1}
        v_mul_u32_u24 v{E+2}, 5, v{E+1}
        v_sub_u32 v{E}, v{E}, v{E+2}
        v_cmp_lt_u32 vcc, 63, v{E+1}
        v_mul_u32_u24 v{E+1}, {HEADB}, v{E+1}
        v_lshlrev_b32 v{E+3}, 2, v{E}
        v_cndmask_b32 v{E+3}, 0, v{E+3}, vcc
        v_lshl_add_u32 v{E}, v{E}, 8, v{E+1}
        """)
        for rt in range(2):
            a(f"v_mul_f32 v{SC+2*rt}, s29, v{RW+2*rt+1}")
        for rt in range(2):
            c = ACC + (tt*2+rt)*4
            for h in range(2):
                a(f"v_pk_fma_f32 v[{c+2*h}:{c+2*h+1}], v[{RW+2*rt}:{RW+2*rt+1}], v[{CW+4*tt+2*h}:{CW+4*tt+2*h+1}], v[{c+2*h}:{c+2*h+1}] {BC} neg_lo:[1,0,0] neg_hi:[1,0,0]")
            for h in range(2):
                a(f"v_pk_mul_f32 v[{c+2*h}:{c+2*h+1}], v[{SC+2*rt}:{SC+2*rt+1}], v[{c+2*h}:{c+2*h+1}] op_sel_hi:[0,1]")
            a(f"""
            v_add_u32 v{U+rt}, v{E+3}, v{R32+rt}
            v_cvt_pk_bf16_f32 v{c}, v{c}, v{c+1}
            v_and_b32 v{U+rt}, 31, v{U+rt}
            v_cvt_pk_bf16_f32 v{c+1}, v{c+2}, v{c+3}
            v_lshl_add_u32 v{U+rt}, v{U+rt}, 3, v{E}
            v_add_u32 v{c+2}, v{U+rt}, v{RO+rt}
            buffer_store_dwordx2 v[{c}:{c+1}], v{c+2}, s[44:47], 0 offen
            """)
    a("s_branch L_k1_fin")
    a("L_k1_mlp:")
    for rt in range(2):
        rowtile_s28(rt)
        a(f"""
        s_mul_i32 s28, s28, {68*1024}
        v_lshl_add_u32 v{RO+rt}, v{T}, 4, s28
        """)
    k0 = -2.0*math.log2(math.e)*math.sqrt(2.0/math.pi)
    k1 = k0*0.044715
    KK = Wf + 52
    BU = Xf
    G = U + 8
    a(f"""
    v_mov_b32 v{KK}, {f32bits(k1)}
    v_mov_b32 v{KK+1}, {f32bits(k0)}
    v_mov_b32 v{KK+2}, 1.0
    v_mov_b32 v{KK+3}, 1.0
    s_waitcnt vmcnt(0)
    """)
    for tt in range(7):
        a(f"""
        s_lshl_b32 s28, s{60+tt}, 4
        s_add_u32 s28, s28, s{sCol}
        s_lshr_b32 s28, s28, 2
        s_add_u32 s28, s28, 160
        v_add_u32 v{E}, s28, v{T+1}
        v_lshrrev_b32 v{E+1}, 3, v{E}
        v_lshlrev_b32 v{E+1}, 10, v{E+1}
        v_and_b32 v{E+2}, 3, v{E}
        v_lshl_add_u32 v{E+1}, v{E+2}, 8, v{E+1}
        v_bfe_u32 v{E+2}, v{E}, 2, 1
        v_lshl_add_u32 v{E}, v{E+2}, 3, v{E+1}
        v_lshlrev_b32 v{BU}, 16, v{aB1+2*tt}
        v_and_b32 v{BU+1}, 0xffff0000, v{aB1+2*tt}
        v_lshlrev_b32 v{BU+2}, 16, v{aB1+2*tt+1}
        v_and_b32 v{BU+3}, 0xffff0000, v{aB1+2*tt+1}
        """)
        for rp in range(1):
            cs = [ACC + (tt*2+2*rp+j)*4 for j in range(2)]
            rts = [2*rp, 2*rp+1]
            prs = [(cs[j]+2*h, rts[j], h, G + 4*j + 2*h) for j in range(2) for h in range(2)]
            for (c, rt, h, g) in prs:
                a(f"v_pk_fma_f32 v[{c}:{c+1}], v[{RW+2*rt}:{RW+2*rt+1}], v[{CW+4*tt+2*h}:{CW+4*tt+2*h+1}], v[{c}:{c+1}] {BC} neg_lo:[1,0,0] neg_hi:[1,0,0]")
            for (c, rt, h, g) in prs:
                a(f"v_pk_fma_f32 v[{c}:{c+1}], v[{RW+2*rt}:{RW+2*rt+1}], v[{c}:{c+1}], v[{BU+2*h}:{BU+2*h+1}] op_sel:[1,0,0] op_sel_hi:[1,1,1]")
            for (c, rt, h, g) in prs:
                a(f"v_pk_mul_f32 v[{g}:{g+1}], v[{c}:{c+1}], v[{c}:{c+1}]")
            for (c, rt, h, g) in prs:
                a(f"v_pk_fma_f32 v[{g}:{g+1}], v[{g}:{g+1}], v[{KK}:{KK+1}], v[{KK}:{KK+1}] op_sel:[0,0,1] op_sel_hi:[1,0,1]")
            for (c, rt, h, g) in prs:
                a(f"v_pk_mul_f32 v[{g}:{g+1}], v[{g}:{g+1}], v[{c}:{c+1}]")
            for i in range(8):
                a(f"v_exp_f32 v{G+i}, v{G+i}")
            for (c, rt, h, g) in prs:
                a(f"v_pk_add_f32 v[{g}:{g+1}], v[{g}:{g+1}], v[{KK+2}:{KK+3}]")
            for i in range(8):
                a(f"v_rcp_f32 v{G+i}, v{G+i}")
            for (c, rt, h, g) in prs:
                a(f"v_pk_mul_f32 v[{c}:{c+1}], v[{c}:{c+1}], v[{g}:{g+1}]")
            for j in range(2):
                c = cs[j]
                a(f"""
                v_cvt_pk_bf16_f32 v{c}, v{c}, v{c+1}
                v_cvt_pk_bf16_f32 v{c+1}, v{c+2}, v{c+3}
                v_add_u32 v{c+2}, v{E}, v{RO+rts[j]}
                buffer_store_dwordx2 v[{c}:{c+1}], v{c+2}, s[48:51], 0 offen
                """)
    a("L_k1_fin:")
    if diag:
        a(f"""
        s_waitcnt vmcnt(0)
        s_memtime s[70:71]
        s_memrealtime s[72:73]
        s_waitcnt lgkmcnt(0)
        s_sub_u32 s34, s34, s32
        s_sub_u32 s68, s68, s32
        s_sub_u32 s70, s70, s32
        s_sub_u32 s72, s72, s74
        s_add_u32 s44, s40, 0x4000000
        s_addc_u32 s45, s41, 0
        s_mov_b32 s46, 0x100000
        s_mov_b32 s47, 0x00020000
        s_lshl_b32 s28, s2, 3
        s_add_u32 s28, s28, s{sWave}
        s_lshl_b32 s28, s28, 4
        v_mov_b32 v{E}, s28
        v_mov_b32 v{U}, s34
        v_mov_b32 v{U+1}, s68
        v_mov_b32 v{U+2}, s70
        v_mov_b32 v{U+3}, s72
        buffer_store_dwordx4 v[{U}:{U+3}], v{E}, s[44:47], 0 offen
        """)
    a("""
    L_k1_end:
    s_endpgm
    """)
    txt = a.text()
    txt = txt.replace("    DIAG0\n", "    s_memtime s[32:33]\n    s_memrealtime s[74:75]\n" if diag else "")
    txt = txt.replace("    DIAG1\n", "    s_memtime s[68:69]\n" if diag else "")
    return txt, kernel_desc(name, 240, 96)
```

```python
from asmlib import *

QKV_BYTES = 96*2048*48
AP_OFF = 0x900000
AP_LD = 4352
AP_BYTES = 2048*AP_LD
HEADB = 2048*48
STEPK = 128
REGB = STEPK*48
BUFB = 4*REGB
NBUF = 3
NSTEP = 1024//STEPK
TPS = STEPK//32
MERGE_OFF = NBUF*BUFB
MLP_OFF = MERGE_OFF + 8*3072
K2_LDS = MLP_OFF + 4*3*5120

def gen_k2(name="attn_kernel", diag=False, X=()):
    a = Asm()
    a.lines.append(kernel_header(name).rstrip("\n"))
    vDMA, vKaL, vKbL = 2, 3, 4
    vKaC, vKbC, vKaN, vKbN = 5, 6, 7, 8
    vVL, vVC, vVN = 128, 132, 136
    QA = [12, 20]
    Kf0, Kf1 = 28, 32
    Vf = 36
    P = 44
    SA, SB = 52, 68
    OA = [84, 100]
    T = 116
    sWave, sHead, sQb, sCh, sSrc, sBufN, sBufD, sPass, sQoff, sKbase, sHalf = 16, 17, 18, 19, 20, 21, 22, 23, 24, 25, 31
    MF = "v_mfma_f32_32x32x16_bf16"
    a(f"""
    s_cmp_ge_u32 s2, 256
    s_cbranch_scc1 L_k2_end
    s_load_dwordx2 s[4:5], s[0:1], 80
    DIAG0
    v_and_b32 v1, 63, v0
    v_lshrrev_b32 v{T}, 6, v0
    s_and_b32 s26, s2, 7
    s_lshr_b32 s27, s2, 3
    v_readfirstlane_b32 s{sWave}, v{T}
    s_nop 3
    s_cmp_ge_u32 s{sWave}, 8
    s_cbranch_scc1 L_k2_mlp
    s_lshl_b32 s{sHead}, s26, 2
    s_and_b32 s28, s27, 3
    s_add_u32 s{sHead}, s{sHead}, s28
    s_lshr_b32 s{sQb}, s27, 2
    s_lshr_b32 s{sHalf}, s{sWave}, 2
    v_lshlrev_b32 v{vDMA}, 4, v1
    v_and_b32 v{T}, 31, v1
    v_lshrrev_b32 v{T+1}, 5, v1
    v_lshlrev_b32 v{vKbL}, 3, v{T}
    v_lshl_add_u32 v{vKaL}, v{T+1}, 9, v{vKbL}
    v_lshl_add_u32 v{vKbL}, v{T+1}, 8, v{vKbL}
    v_add_u32 v{vKbL}, 1024, v{vKbL}
    v_bfe_u32 v{T+2}, v1, 2, 2
    v_lshl_add_u32 v{T+2}, v{T+1}, 2, v{T+2}
    v_bfe_u32 v{T+3}, v1, 4, 1
    v_and_b32 v{T+4}, 3, v1
    v_lshl_add_u32 v{T+3}, v{T+3}, 2, v{T+4}
    v_lshl_add_u32 v{T+2}, v{T+3}, 2, v{T+2}
    v_lshlrev_b32 v{T+3}, 8, v{T+3}
    v_and_b32 v{T+4}, 31, v{T+2}
    v_lshl_add_u32 v{vVL}, v{T+4}, 3, v{T+3}
    v_add_u32 v{T+4}, 8, v{T+2}
    v_and_b32 v{T+4}, 31, v{T+4}
    v_lshl_add_u32 v{vVL+1}, v{T+4}, 3, v{T+3}
    v_add_u32 v{T+4}, 16, v{T+2}
    v_and_b32 v{T+4}, 31, v{T+4}
    v_lshl_add_u32 v{vVL+2}, v{T+4}, 3, v{T+3}
    v_add_u32 v{T+4}, 24, v{T+2}
    v_and_b32 v{T+4}, 31, v{T+4}
    v_lshl_add_u32 v{vVL+3}, v{T+4}, 3, v{T+3}
    s_waitcnt lgkmcnt(0)
    s_mov_b32 s8, s4
    s_mov_b32 s9, s5
    s_mov_b32 s10, {QKV_BYTES}
    s_mov_b32 s11, 0x00020000
    s_add_u32 s12, s4, {AP_OFF}
    s_addc_u32 s13, s5, 0
    s_mov_b32 s14, {AP_BYTES}
    s_mov_b32 s15, 0x00020000
    s_mul_i32 s{sQoff}, s{sHead}, {HEADB}
    s_lshl_b32 s26, s{sQb}, 2
    s_and_b32 s27, s{sWave}, 3
    s_add_u32 s26, s26, s27
    s_mul_i32 s26, s26, {64*48}
    s_add_u32 s{sQoff}, s{sQoff}, s26
    buffer_load_dwordx2 v[{QA[0]}:{QA[0]+1}], v{vKaL}, s[8:11], s{sQoff} offen
    buffer_load_dwordx2 v[{QA[0]+2}:{QA[0]+3}], v{vKaL}, s[8:11], s{sQoff} offen offset:256
    buffer_load_dwordx2 v[{QA[0]+4}:{QA[0]+5}], v{vKbL}, s[8:11], s{sQoff} offen
    buffer_load_dwordx2 v[{QA[1]}:{QA[1]+1}], v{vKaL}, s[8:11], s{sQoff} offen offset:1536
    buffer_load_dwordx2 v[{QA[1]+2}:{QA[1]+3}], v{vKaL}, s[8:11], s{sQoff} offen offset:1792
    buffer_load_dwordx2 v[{QA[1]+4}:{QA[1]+5}], v{vKbL}, s[8:11], s{sQoff} offen offset:1536
    s_add_u32 s26, s{sHead}, 32
    s_mul_i32 s{sKbase}, s26, {HEADB}
    s_lshr_b32 s26, s{sWave}, 2
    s_mul_i32 s26, s26, {32*HEADB}
    s_add_u32 s{sSrc}, s{sKbase}, s26
    s_bfe_u32 s26, s{sWave}, 0x10001
    s_mul_i32 s26, s26, {1024*48}
    s_add_u32 s{sSrc}, s{sSrc}, s26
    s_and_b32 s26, s{sWave}, 1
    s_mul_i32 s26, s26, 3072
    s_add_u32 s{sSrc}, s{sSrc}, s26
    s_mov_b32 s{sPass}, 0
    s_mov_b32 s30, 0x07060302
    """)
    def setshift(q):
        a(f"""
        v_mov_b32 v{T+1}, v{T}
        s_nop 1
        v_permlane32_swap_b32 v{T}, v{T+1}
        s_nop 1
        v_max_f32 v{T}, v{T}, v{T+1}
        v_sub_f32 v{T}, 0, v{T}
        v_and_b32 v{T+1}, 0xffff0000, v{T}
        v_sub_f32 v{T+2}, v{T}, v{T+1}
        v_perm_b32 v{T+2}, v{T+2}, v{T+1}, s30
        v_cmp_gt_u32 vcc, 32, v1
        s_nop 1
        v_cndmask_b32 v{q+4}, v{T+2}, v{q+4}, vcc
        """)
    def dma(step_s, buf_s):
        a(f"""
        s_mul_i32 s26, s{sWave}, 3072
        s_add_u32 s26, s26, {buf_s}
        s_mov_b32 m0, s26
        s_mul_i32 s27, {step_s}, {REGB}
        s_add_u32 s27, s27, s{sSrc}
        buffer_load_dwordx4 v{vDMA}, s[8:11], s27 offen lds
        buffer_load_dwordx4 v{vDMA}, s[8:11], s27 offen offset:1024 lds
        buffer_load_dwordx4 v{vDMA}, s[8:11], s27 offen offset:2048 lds
        """)
    def qk(S, q):
        a(f"{MF} v[{S}:{S+15}], v[{Kf0}:{Kf0+3}], v[{q}:{q+3}], 0")
        a(f"{MF} v[{S}:{S+15}], v[{Kf1}:{Kf1+3}], v[{q+4}:{q+7}], v[{S}:{S+15}]")
    def vreads1(addr, tile, j):
        for e2 in range(2):
            a(f"ds_read_b64_tr_b16 v[{Vf+4*j+2*e2}:{Vf+4*j+2*e2+1}], v{addr+2*j+e2} offset:{tile*1536}")
    def kreads(a0, a1, tile):
        a(f"ds_read_b64 v[{Kf0}:{Kf0+1}], v{a0} offset:{tile*1536}")
        a(f"ds_read_b64 v[{Kf0+2}:{Kf0+3}], v{a0} offset:{tile*1536+256}")
        a(f"ds_read_b64 v[{Kf1}:{Kf1+1}], v{a1} offset:{tile*1536}")
    dma("0", "0")
    dma("1", str(BUFB))
    for i in range(32):
        a(f"v_mov_b32 v{OA[0]+i}, 0")
    a(f"""
    s_mul_i32 s26, s{sHalf}, {REGB}
    v_add_u32 v{vKaC}, s26, v{vKaL}
    v_add_u32 v{vKbC}, s26, v{vKbL}
    s_add_u32 s27, s26, {2*REGB}
    v_add_u32 v{vVC}, s27, v{vVL}
    v_add_u32 v{vVC+1}, s27, v{vVL+1}
    v_add_u32 v{vVC+2}, s27, v{vVL+2}
    v_add_u32 v{vVC+3}, s27, v{vVL+3}
    v_add_u32 v{vKaN}, {BUFB}, v{vKaC}
    v_add_u32 v{vKbN}, {BUFB}, v{vKbC}
    v_add_u32 v{vVN}, {BUFB}, v{vVC}
    v_add_u32 v{vVN+1}, {BUFB}, v{vVC+1}
    v_add_u32 v{vVN+2}, {BUFB}, v{vVC+2}
    v_add_u32 v{vVN+3}, {BUFB}, v{vVC+3}
    v_mov_b32 v{Kf1+2}, 0
    v_mov_b32 v{Kf1+3}, 0
    s_mov_b32 s{sBufN}, {BUFB}
    s_mov_b32 s{sBufD}, {2*BUFB}
    s_mov_b32 s{sCh}, 0
    s_waitcnt vmcnt(6)
    v_cmp_gt_u32 vcc, 32, v1
    """)
    for q in QA:
        a(f"""
        v_mov_b32 v{q+6}, 0
        v_mov_b32 v{q+7}, 0
        v_cndmask_b32 v{q+4}, 0, v{q+4}, vcc
        v_cndmask_b32 v{q+5}, 0, v{q+5}, vcc
        """)
    a(f"""
    s_waitcnt vmcnt(3)
    s_barrier
    """)
    kreads(vKaL, vKbL, 0)
    a("s_waitcnt lgkmcnt(0)")
    qk(SA, QA[0]); qk(SB, QA[1])
    kreads(vKaC, vKbC, 0)
    a("s_nop 15")
    for S, q in ((SA, QA[0]), (SB, QA[1])):
        a(f"v_max3_f32 v{T}, v{S}, v{S+1}, v{S+2}")
        for i in range(3, 15, 2):
            a(f"v_max3_f32 v{T}, v{T}, v{S+i}, v{S+i+1}")
        a(f"v_max_f32 v{T}, v{T}, v{S+15}")
        setshift(q)
    a("s_waitcnt lgkmcnt(0)")
    a("s_nop 1")
    qk(SA, QA[0])
    vreads1(vVC, 0, 1)
    vreads1(vVC, 0, 0)
    for i in range(4, 8):
        a(f"v_mov_b32 v{P+i}, 0")
    a("s_nop 7")
    if diag: a("s_memtime s[34:35]")
    a("L_k2_loop:")
    NJ = 2*TPS
    for j in range(NJ):
        t = j >> 1; qi = j & 1
        S = SA if j % 2 == 0 else SB
        N = SB if j % 2 == 0 else SA
        O = OA[qi]; Oprev = OA[1-qi]
        Qn = QA[1-qi]
        ex = lambda i: a(f"v_exp_f32 v{S+i}, v{S+i}")
        cv = lambda i: a(f"v_cvt_pk_bf16_f32 v{P+i}, v{S+2*i}, v{S+2*i+1}")
        if qi == 1:
            a("s_waitcnt lgkmcnt(2)")
        a(f"{MF} v[{N}:{N+15}], v[{Kf0}:{Kf0+3}], v[{Qn}:{Qn+3}], 0")
        for i in range(4): ex(i)
        a(f"{MF} v[{N}:{N+15}], v[{Kf1}:{Kf1+3}], v[{Qn+4}:{Qn+7}], v[{N}:{N+15}]")
        if qi == 0:
            if t == TPS-1:
                lab = "L_k2_nodma"
                a(f"""
                s_waitcnt vmcnt(0)
                s_barrier
                s_add_u32 s28, s{sCh}, 2
                s_cmp_ge_u32 s28, {NSTEP}
                s_cbranch_scc1 {lab}
                """)
                dma("s28", f"s{sBufD}")
                a(f"{lab}:")
                kreads(vKaN, vKbN, 0)
            else:
                kreads(vKaC, vKbC, t+1)
        for i in range(4, 8): ex(i)
        cv(0); cv(1)
        if qi == 0:
            a("s_waitcnt lgkmcnt(5)")
        else:
            a("s_waitcnt lgkmcnt(0)")
        a(f"{MF} v[{Oprev}:{Oprev+15}], v[{Vf+4}:{Vf+7}], v[{P+4}:{P+7}], v[{Oprev}:{Oprev+15}]")
        if qi == 0:
            vreads1(vVC, t, 1)
        for i in range(8, 12): ex(i)
        cv(2); cv(3)
        if qi == 0:
            a("s_waitcnt lgkmcnt(5)")
            a("s_nop 0")
        else:
            a("s_nop 1")
        a(f"{MF} v[{O}:{O+15}], v[{Vf}:{Vf+3}], v[{P}:{P+3}], v[{O}:{O+15}]")
        if qi == 1:
            if t+1 < TPS:
                vreads1(vVC, t+1, 0)
            else:
                vreads1(vVN, 0, 0)
        for i in range(12, 16): ex(i)
        cv(4); cv(5); cv(6); cv(7)
    a(f"""
    v_mov_b32 v{vKaC}, v{vKaN}
    v_mov_b32 v{vKbC}, v{vKbN}
    v_mov_b32 v{vVC}, v{vVN}
    v_mov_b32 v{vVC+1}, v{vVN+1}
    v_mov_b32 v{vVC+2}, v{vVN+2}
    v_mov_b32 v{vVC+3}, v{vVN+3}
    s_mov_b32 s{sBufN}, s{sBufD}
    s_add_u32 s{sBufD}, s{sBufD}, {BUFB}
    s_cmp_ge_u32 s{sBufD}, {NBUF*BUFB}
    s_cselect_b32 s{sBufD}, 0, s{sBufD}
    s_mul_i32 s26, s{sHalf}, {REGB}
    s_add_u32 s26, s26, s{sBufN}
    v_add_u32 v{vKaN}, s26, v{vKaL}
    v_add_u32 v{vKbN}, s26, v{vKbL}
    s_add_u32 s26, s26, {2*REGB}
    v_add_u32 v{vVN}, s26, v{vVL}
    v_add_u32 v{vVN+1}, s26, v{vVL+1}
    v_add_u32 v{vVN+2}, s26, v{vVL+2}
    v_add_u32 v{vVN+3}, s26, v{vVL+3}
    s_add_u32 s{sCh}, s{sCh}, 1
    s_cmp_lt_u32 s{sCh}, {NSTEP}
    s_cbranch_scc1 L_k2_loop
    DIAG1
    s_waitcnt lgkmcnt(0)
    {MF} v[{OA[1]}:{OA[1]+15}], v[{Vf+4}:{Vf+7}], v[{P+4}:{P+7}], v[{OA[1]}:{OA[1]+15}]
    s_mul_i32 s26, s{sWave}, 3072
    s_add_u32 s26, s26, {MERGE_OFF}
    v_add_u32 v{T}, s26, v{vDMA}
    s_xor_b32 s27, s{sWave}, 4
    s_mul_i32 s27, s27, 3072
    s_add_u32 s27, s27, {MERGE_OFF}
    v_add_u32 v{T+1}, s27, v{vDMA}
    s_nop 15
    s_cmp_eq_u32 s{sHalf}, 0
    s_cbranch_scc1 L_k2_h0
    """)
    for i in range(3):
        a(f"ds_write_b128 v{T}, v[{OA[0]+4*i}:{OA[0]+4*i+3}] offset:{1024*i}")
    a("s_waitcnt lgkmcnt(0)")
    for i in range(12):
        a(f"v_mov_b32 v{OA[0]+i}, v{OA[1]+i}")
    for i in range(8):
        a(f"v_mov_b32 v{QA[0]+i}, v{QA[1]+i}")
    a("s_branch L_k2_merge")
    a("L_k2_h0:")
    for i in range(3):
        a(f"ds_write_b128 v{T}, v[{OA[1]+4*i}:{OA[1]+4*i+3}] offset:{1024*i}")
    a("s_waitcnt lgkmcnt(0)")
    a("L_k2_merge:")
    a("s_barrier")
    O = OA[0]; Q0 = QA[0]; Q1 = QA[0]+4
    for i in range(3):
        a(f"ds_read_b128 v[{OA[1]+4*i}:{OA[1]+4*i+3}], v{T+1} offset:{1024*i}")
    a("s_waitcnt lgkmcnt(0)")
    for i in range(12):
        a(f"v_add_f32 v{O+i}, v{O+i}, v{OA[1]+i}")
    a(f"""
    L_k2_getl:
    v_mov_b32 v{T}, v{O+8}
    v_mov_b32 v{T+1}, v{O+8}
    s_nop 1
    v_permlane32_swap_b32 v{T}, v{T+1}
    s_nop 1
    s_cmp_lg_u32 s{sPass}, 0
    s_cbranch_scc1 L_k2_store
    v_mov_b32 v{T+2}, 0x5f800000
    v_cmp_nle_f32 vcc, v{T+1}, v{T+2}
    s_cmp_eq_u64 vcc, 0
    s_cbranch_scc1 L_k2_store
    s_mov_b32 s{sPass}, 1
    v_cmp_gt_u32 vcc, 32, v1
    s_nop 1
    v_cndmask_b32 v{Q1}, 0, v{Q1}, vcc
    v_mov_b32 v{T}, 0xff800000
    s_mov_b32 s26, 0
    L_k2_maxloop:
    s_mul_i32 s27, s26, 1536
    s_add_u32 s27, s27, s{sKbase}
    buffer_load_dwordx2 v[{Kf0}:{Kf0+1}], v{vKaL}, s[8:11], s27 offen
    buffer_load_dwordx2 v[{Kf0+2}:{Kf0+3}], v{vKaL}, s[8:11], s27 offen offset:256
    buffer_load_dwordx2 v[{Kf1}:{Kf1+1}], v{vKbL}, s[8:11], s27 offen
    s_waitcnt vmcnt(0)
    """)
    qk(SA, Q0)
    a("s_nop 15\ns_nop 3")
    for i in range(0, 16, 2):
        a(f"v_max3_f32 v{T}, v{T}, v{SA+i}, v{SA+i+1}")
    a(f"""
    s_add_u32 s26, s26, 1
    s_cmp_lt_u32 s26, 64
    s_cbranch_scc1 L_k2_maxloop
    """)
    setshift(Q0)
    for i in range(16):
        a(f"v_mov_b32 v{O+i}, 0")
    a(f"""
    s_xor_b32 s28, s{sWave}, 4
    s_mul_i32 s28, s28, 3072
    s_add_u32 s28, s28, {MERGE_OFF}
    v_add_u32 v{vVC}, s28, v{vVL}
    v_add_u32 v{vVC+1}, s28, v{vVL+1}
    v_add_u32 v{vVC+2}, s28, v{vVL+2}
    v_add_u32 v{vVC+3}, s28, v{vVL+3}
    s_mov_b32 s26, 0
    L_k2_slowloop:
    s_mov_b32 m0, s28
    s_mul_i32 s27, s26, 3072
    s_add_u32 s27, s27, s{sKbase}
    s_add_u32 s29, s27, {32*HEADB}
    buffer_load_dwordx4 v{vDMA}, s[8:11], s29 offen lds
    buffer_load_dwordx4 v{vDMA}, s[8:11], s29 offen offset:1024 lds
    buffer_load_dwordx4 v{vDMA}, s[8:11], s29 offen offset:2048 lds
    """)
    for tt in range(2):
        a(f"""
        buffer_load_dwordx2 v[{Kf0}:{Kf0+1}], v{vKaL}, s[8:11], s27 offen offset:{tt*1536}
        buffer_load_dwordx2 v[{Kf0+2}:{Kf0+3}], v{vKaL}, s[8:11], s27 offen offset:{tt*1536+256}
        buffer_load_dwordx2 v[{Kf1}:{Kf1+1}], v{vKbL}, s[8:11], s27 offen offset:{tt*1536}
        s_waitcnt vmcnt(0)
        """)
        qk(SA, Q0)
        vreads1(vVC, tt, 0); vreads1(vVC, tt, 1)
        a("s_nop 15")
        for i in range(16):
            a(f"v_exp_f32 v{SA+i}, v{SA+i}")
        a("s_nop 0")
        for i in range(8):
            a(f"v_cvt_pk_bf16_f32 v{P+i}, v{SA+2*i}, v{SA+2*i+1}")
        a(f"""
        s_waitcnt lgkmcnt(0)
        s_nop 1
        {MF} v[{O}:{O+15}], v[{Vf}:{Vf+3}], v[{P}:{P+3}], v[{O}:{O+15}]
        {MF} v[{O}:{O+15}], v[{Vf+4}:{Vf+7}], v[{P+4}:{P+7}], v[{O}:{O+15}]
        s_nop 7
        """)
    a(f"""
    s_add_u32 s26, s26, 1
    s_cmp_lt_u32 s26, 32
    s_cbranch_scc1 L_k2_slowloop
    s_nop 15
    s_branch L_k2_getl
    L_k2_store:
    v_rcp_f32 v{T+1}, v{T+1}
    s_lshl_b32 s26, s{sQb}, 3
    s_and_b32 s27, s{sWave}, 3
    s_lshl_b32 s27, s27, 1
    s_add_u32 s26, s26, s27
    s_add_u32 s26, s26, s{sHalf}
    s_lshl_b32 s26, s26, 5
    v_and_b32 v{T+2}, 31, v1
    v_add_u32 v{T+2}, s26, v{T+2}
    v_lshrrev_b32 v{T+3}, 4, v{T+2}
    v_mul_u32_u24 v{T+3}, {68*1024}, v{T+3}
    v_and_b32 v{T+2}, 15, v{T+2}
    v_lshl_add_u32 v{T+2}, v{T+2}, 4, v{T+3}
    v_lshrrev_b32 v{T+3}, 5, v1
    s_mul_i32 s27, s{sHead}, 5
    v_add_u32 v{T+3}, s27, v{T+3}
    """)
    for i in range(12):
        a(f"v_mul_f32 v{O+i}, v{O+i}, v{T+1}")
    for i in range(3):
        a(f"""
        v_add_u32 v{T+4}, {2*i}, v{T+3}
        v_lshrrev_b32 v{T+5}, 3, v{T+4}
        v_lshlrev_b32 v{T+5}, 10, v{T+5}
        v_and_b32 v{T+6}, 3, v{T+4}
        v_lshl_add_u32 v{T+5}, v{T+6}, 8, v{T+5}
        v_bfe_u32 v{T+6}, v{T+4}, 2, 1
        v_lshl_add_u32 v{T+5}, v{T+6}, 3, v{T+5}
        v_add_u32 v{T+5}, v{T+5}, v{T+2}
        v_cvt_pk_bf16_f32 v{T+8}, v{O+4*i}, v{O+4*i+1}
        v_cvt_pk_bf16_f32 v{T+9}, v{O+4*i+2}, v{O+4*i+3}
        """)
        if i == 2:
            a(f"""
            v_cmp_gt_u32 vcc, 32, v1
            v_mov_b32 v{T+6}, 0x7ffffff0
            s_nop 0
            v_cndmask_b32 v{T+5}, v{T+6}, v{T+5}, vcc
            """)
        a(f"buffer_store_dwordx2 v[{T+8}:{T+9}], v{T+5}, s[12:15], 0 offen")
        a("s_nop 1")
    if diag:
        a(f"""
        s_waitcnt vmcnt(0)
        s_memtime s[38:39]
        s_memrealtime s[42:43]
        s_waitcnt lgkmcnt(0)
        s_sub_u32 s34, s34, s32
        s_sub_u32 s36, s36, s32
        s_sub_u32 s38, s38, s32
        s_sub_u32 s42, s42, s40
        s_add_u32 s44, s4, 0x4000000
        s_addc_u32 s45, s5, 0
        s_mov_b32 s46, 0x100000
        s_mov_b32 s47, 0x00020000
        s_lshl_b32 s26, s2, 3
        s_add_u32 s26, s26, s{sWave}
        s_lshl_b32 s26, s26, 4
        v_mov_b32 v{T}, s26
        v_mov_b32 v{T+4}, s34
        v_mov_b32 v{T+5}, s36
        v_mov_b32 v{T+6}, s38
        v_mov_b32 v{T+7}, s42
        buffer_store_dwordx4 v[{T+4}:{T+7}], v{T}, s[44:47], 0 offen
        """)
    a("""
    L_k2_end:
    s_endpgm
    L_k2_mlp:
    """)
    import k3
    k3.gen_mlp2_waves(a, MLP_OFF, NSTEP+2, X=X, diag=diag)
    txt = a.text()
    txt = txt.replace("    DIAG0\n", "    s_memtime s[32:33]\n    s_memrealtime s[40:41]\n" if diag else "")
    txt = txt.replace("    DIAG1\n", "    s_memtime s[36:37]\n" if diag else "")
    return txt, kernel_desc(name, 168, 96)
```

```python
from asmlib import *
from k1 import VmTrack

AP_OFF = 0x900000
AP_BYTES = 2048*4352
PART_OFF = 0x1200000
PART_BYTES = 256*20*1024
WB = 5120
PSTR = 336
WREG = 64*PSTR
K3_LDS = 4*WREG
MF = "v_mfma_f32_16x16x32_bf16"

def gemm_setup(a, R, S, lane="v1"):
    vWD, vA, vR, T = R["vWD"], R["vA"], R["vR"], R["T"]
    for i in range(5):
        a(f"""
        v_add_u32 v{T}, {64*i}, {lane}
        v_mul_u32_u24 v{T+1}, 0xcccd, v{T}
        v_lshrrev_b32 v{T+1}, 19, v{T+1}
        v_mul_u32_u24 v{T+2}, 10, v{T+1}
        v_sub_u32 v{T}, v{T}, v{T+2}
        v_mul_u32_u24 v{T+1}, 1280, v{T+1}
        v_lshl_add_u32 v{vWD+i}, v{T}, 4, v{T+1}
        """)
        if i and i < 4: a(f"v_subrev_u32 v{vWD+i}, {1024*i}, v{vWD+i}")
    a(f"""
    v_lshlrev_b32 v{T+3}, 4, {lane}
    """)
    for rt in range(4):
        a(f"""
        s_add_u32 s{S['sT']}, s{S['sWv']}, {rt}
        s_and_b32 s{S['sT']}, s{S['sT']}, 3
        s_mul_i32 s{S['sT']}, s{S['sT']}, 69632
        v_add_u32 v{vA+rt}, s{S['sT']}, v{T+3}
        """)
    a(f"""
    v_lshrrev_b32 v{T}, 2, {lane}
    v_mul_u32_u24 v{vR}, 160, v{T}
    v_and_b32 v{T}, 3, {lane}
    v_lshl_add_u32 v{vR}, v{T}, 3, v{vR}
    v_add_u32 v{vR}, s{S['sLds']}, v{vR}
    """)

def gemm_loop(a, R, S, NK, NWB, NAB, vm, init_acc, bar_after=(), diag_stamp=None):
    vWD, vA, vR, Wf, Af, ACC = R["vWD"], R["vA"], R["vR"], R["Wf"], R["Af"], R["ACC"]
    sW, sA, sWoff, sAoff, sLds, sT = S["srdW"], S["srdA"], S["sWoff"], S["sAoff"], S["sLds"], S["sT"]
    def wdma(i):
        L = [f"s_add_u32 s{sT}, s{sLds}, {(i % NWB)*WB}", f"s_mov_b32 m0, s{sT}", f"s_add_u32 s{sT}, s{sT}, 4096"]
        L += [f"buffer_load_dwordx4 v{vWD+j}, s[{sW}:{sW+3}], s{sWoff} offen offset:{j*1024} lds" for j in range(4)]
        L += [f"s_mov_b32 m0, s{sT}", "s_nop 0", f"buffer_load_dwordx4 v{vWD+4}, s[{sW}:{sW+3}], s{sWoff} offen lds",
              f"s_add_u32 s{sWoff}, s{sWoff}, {32*1280}"]
        return L
    def aload(i):
        L = []
        if i % 4 == 0 and i > 0:
            L.append(f"s_add_u32 s{sAoff}, s{sAoff}, 4096")
        for rt in range(4):
            r = Af + (i % NAB)*16 + rt*4
            L.append(f"buffer_load_dwordx4 v[{r}:{r+3}], v{vA+rt}, s[{sA}:{sA+3}], s{sAoff} offen offset:{(i % 4)*1024}")
        return L
    def emit(L, tag):
        for l in L:
            a(l)
            if l.startswith("buffer_load"): vm.issue(tag)
    def wreads(i):
        L = []
        for t in range(5):
            for hf in range(2):
                r = Wf + (i & 1)*20 + t*4 + hf*2
                L.append(f"ds_read_b64_tr_b16 v[{r}:{r+1}], v{vR} offset:{(i % NWB)*WB + hf*2560 + t*32}")
        return L
    WD = NWB - 1
    AD = NAB - 1
    for i in range(max(WD, AD)):
        if i < WD and i < NK: emit(wdma(i), ("w", i))
        if i < AD and i < NK: emit(aload(i), ("a", i))
    init_acc()
    n = vm.wait_for(("w", 0))
    a(f"s_waitcnt vmcnt({n})")
    for l in wreads(0): a(l)
    if diag_stamp: a(diag_stamp)
    for i in range(NK):
        n1 = vm.wait_for(("a", i))
        if i == 0: n1 = min(n1, vm.wait_for(("c", 0)))
        if i+1 < NK:
            n1 = min(n1, vm.wait_for(("w", i+1)))
        a(f"s_waitcnt vmcnt({n1}) lgkmcnt(0)")
        rd = wreads(i+1) if i+1 < NK else []
        al = aload(i+AD) if i+AD < NK else []
        wd = wdma(i+WD) if i+WD < NK else []
        wb = Wf + (i & 1)*20; ab = Af + (i % NAB)*16
        mf = []
        for t in range(5):
            for rt in range(4):
                c = ACC + (t*4+rt)*4
                mf.append(f"{MF} v[{c}:{c+3}], v[{wb+t*4}:{wb+t*4+3}], v[{ab+rt*4}:{ab+rt*4+3}], v[{c}:{c+3}]")
        slots = [[] for _ in range(20)]
        if NAB == 2:
            for j, l in enumerate(al): slots[j//2].append((l, ("a", i+AD)))
        else:
            for j, l in enumerate(al): slots[j//2].append((l, ("a", i+AD)))
        for j, l in enumerate(wd): slots[3 + j//2].append((l, ("w", i+WD)))
        for j, l in enumerate(rd): slots[j].append((l, None))
        for j in range(20):
            a(mf[j])
            for l, tag in slots[j]:
                a(l)
                if l.startswith("buffer_load"): vm.issue(tag)
        for _ in range(bar_after.count(i)):
            a("s_barrier")

def gen_k3(name="out_kernel", diag=False, X=()):
    NK = 5
    a = Asm()
    a.lines.append(kernel_header(name).rstrip("\n"))
    R = dict(vWD=2, vA=7, vR=11, T=12, Wf=20, Af=60, ACC=140)
    T = R["T"]; Wf = R["Wf"]; ACC = R["ACC"]
    sWave, sRb, sCg, sAoff, sLds, sWoff = 40, 41, 42, 44, 45, 43
    S = dict(srdW=8, srdA=12, sWoff=sWoff, sAoff=sAoff, sLds=sLds, sT=47, sWv=sWave)
    a(f"""
    s_cmp_ge_u32 s2, 256
    s_cbranch_scc1 L_k3_end
    s_load_dwordx2 s[4:5], s[0:1], 16
    s_load_dwordx2 s[22:23], s[0:1], 56
    s_load_dwordx2 s[6:7], s[0:1], 80
    s_load_dwordx2 s[24:25], s[0:1], 0
    s_load_dwordx2 s[26:27], s[0:1], 64
    DIAG0
    v_and_b32 v1, 63, v0
    v_lshrrev_b32 v{T}, 6, v0
    s_and_b32 s28, s2, 7
    s_lshr_b32 s29, s2, 3
    v_readfirstlane_b32 s{sWave}, v{T}
    s_lshl_b32 s28, s28, 2
    s_and_b32 s30, s29, 3
    s_add_u32 s{sRb}, s28, s30
    s_lshr_b32 s{sCg}, s29, 2
    s_mul_i32 s{sLds}, s{sWave}, {max(WREG, 5*WB)}
    """)
    gemm_setup(a, R, S)
    a(f"""
    s_mul_i32 s{sAoff}, s{sRb}, {4*69632}
    s_mul_i32 s28, s{sWave}, {NK*1024}
    s_add_u32 s{sAoff}, s{sAoff}, s28
    s_mul_i32 s46, s{sCg}, 160
    s_mul_i32 s{sWoff}, s{sWave}, {NK*32*1280}
    s_add_u32 s{sWoff}, s{sWoff}, s46
    s_lshl_b32 s28, s{sRb}, 3
    s_add_u32 s28, s28, s{sCg}
    s_lshl_b32 s28, s28, 2
    s_add_u32 s28, s28, s{sWave}
    s_mul_i32 s48, s28, {5*1024}
    v_lshlrev_b32 v{T+7}, 4, v1
    s_waitcnt lgkmcnt(0)
    DIAG2
    s_mov_b32 s8, s4
    s_mov_b32 s9, s5
    s_mov_b32 s10, {640*1280}
    s_mov_b32 s11, 0x00020000
    s_add_u32 s12, s6, {AP_OFF}
    s_addc_u32 s13, s7, 0
    s_mov_b32 s14, {AP_BYTES}
    s_mov_b32 s15, 0x00020000
    s_add_u32 s16, s6, {PART_OFF}
    s_addc_u32 s17, s7, 0
    s_mov_b32 s18, {PART_BYTES}
    s_mov_b32 s19, 0x00020000
    s_mov_b32 s28, s24
    s_mov_b32 s29, s25
    s_mov_b32 s30, {2048*1280}
    s_mov_b32 s31, 0x00020000
    s_mov_b32 s32, s26
    s_mov_b32 s33, s27
    s_mov_b32 s34, {2048*1280}
    s_mov_b32 s35, 0x00020000
    s_mov_b32 s36, s22
    s_mov_b32 s37, s23
    s_mov_b32 s38, 1280
    s_mov_b32 s39, 0x00020000
    """)
    vm = VmTrack()
    def init_acc():
        for t in range(5):
            if t == 4: a(f"s_add_u32 s48, s48, 4096")
            a(f"buffer_load_dwordx4 v[{ACC+16*t}:{ACC+16*t+3}], v{T+7}, s[16:19], s48 offen offset:{(t%4)*1024}")
            vm.issue(("c", 0))
        for t in range(5):
            for i in range(4, 16): a(f"v_mov_b32 v{ACC+16*t+i}, 0")
    gemm_loop(a, R, S, NK, NWB=6, NAB=6, vm=vm, init_acc=init_acc, diag_stamp="s_memtime s[54:55]" if diag else None)
    a("DIAG1")
    LREG = max(WREG, 5*WB)
    a(f"""
    v_and_b32 v{T}, 15, v1
    v_mul_u32_u24 v{T}, {PSTR}, v{T}
    v_lshrrev_b32 v{T+1}, 4, v1
    v_lshl_add_u32 v{T}, v{T+1}, 4, v{T}
    v_add_u32 v{T}, s{sLds}, v{T}
    """)
    for rt in range(4):
        a(f"""
        s_add_u32 s47, s{sWave}, {rt}
        s_and_b32 s47, s47, 3
        s_mul_i32 s47, s47, {16*PSTR}
        v_add_u32 v{90+rt}, s47, v{T}
        """)
    XI = 60; BI = 70; OFF = 80; LA = 85
    for j in range(5):
        a(f"""
        v_add_u32 v{T+2}, {256*j}, v0
        v_mul_u32_u24 v{T+3}, 0xcccd, v{T+2}
        v_lshrrev_b32 v{T+3}, 20, v{T+3}
        v_mul_u32_u24 v{T+4}, 20, v{T+3}
        v_sub_u32 v{T+2}, v{T+2}, v{T+4}
        v_mul_u32_u24 v{LA+j}, {PSTR}, v{T+3}
        v_lshl_add_u32 v{LA+j}, v{T+2}, 4, v{LA+j}
        s_lshl_b32 s47, s{sRb}, 6
        v_add_u32 v{T+3}, s47, v{T+3}
        v_mul_u32_u24 v{OFF+j}, 1280, v{T+3}
        v_lshl_add_u32 v{T+2}, v{T+2}, 3, s46
        v_add_u32 v{OFF+j}, v{OFF+j}, v{T+2}
        buffer_load_dwordx2 v[{XI+2*j}:{XI+2*j+1}], v{OFF+j}, s[28:31], 0 offen
        buffer_load_dwordx2 v[{BI+2*j}:{BI+2*j+1}], v{T+2}, s[36:39], 0 offen
        """)
    for t in range(5):
        for rt in range(4):
            c = ACC + (t*4+rt)*4
            a(f"ds_write_b128 v{90+rt}, v[{c}:{c+3}] offset:{t*64}")
    a("s_waitcnt lgkmcnt(0)\ns_barrier")
    a("DIAG3")
    PR = ACC
    for j in range(5):
        for w in range(4):
            r = PR + (j*4+w)*4
            if w*LREG <= 65535:
                a(f"ds_read_b128 v[{r}:{r+3}], v{LA+j} offset:{w*LREG}")
            else:
                a(f"v_add_u32 v{T+5}, {w*LREG}, v{LA+j}")
                a(f"ds_read_b128 v[{r}:{r+3}], v{T+5}")
    a("s_waitcnt vmcnt(0)")
    for j in range(5):
        r = PR + j*16
        a(f"s_waitcnt lgkmcnt({min(15, 4*(4-j))})")
        for h in range(2):
            a(f"v_pk_add_f32 v[{r+2*h}:{r+2*h+1}], v[{r+2*h}:{r+2*h+1}], v[{r+4+2*h}:{r+4+2*h+1}]")
            a(f"v_pk_add_f32 v[{r+8+2*h}:{r+8+2*h+1}], v[{r+8+2*h}:{r+8+2*h+1}], v[{r+12+2*h}:{r+12+2*h+1}]")
        for h in range(2):
            a(f"v_pk_add_f32 v[{r+2*h}:{r+2*h+1}], v[{r+2*h}:{r+2*h+1}], v[{r+8+2*h}:{r+8+2*h+1}]")
        for h in range(2):
            a(f"""
            v_lshlrev_b32 v{r+4+2*h}, 16, v{XI+2*j+h}
            v_and_b32 v{r+5+2*h}, 0xffff0000, v{XI+2*j+h}
            v_lshlrev_b32 v{r+8+2*h}, 16, v{BI+2*j+h}
            v_and_b32 v{r+9+2*h}, 0xffff0000, v{BI+2*j+h}
            """)
        for h in range(2):
            a(f"v_pk_add_f32 v[{r+2*h}:{r+2*h+1}], v[{r+2*h}:{r+2*h+1}], v[{r+8+2*h}:{r+8+2*h+1}]")
        for h in range(2):
            a(f"v_pk_add_f32 v[{r+2*h}:{r+2*h+1}], v[{r+2*h}:{r+2*h+1}], v[{r+4+2*h}:{r+4+2*h+1}]")
        a(f"""
        v_cvt_pk_bf16_f32 v{r+12}, v{r}, v{r+1}
        v_cvt_pk_bf16_f32 v{r+13}, v{r+2}, v{r+3}
        buffer_store_dwordx2 v[{r+12}:{r+13}], v{OFF+j}, s[32:35], 0 offen
        """)
    if diag:
        a(f"""
        s_waitcnt vmcnt(0)
        s_memtime s[58:59]
        s_memrealtime s[60:61]
        s_waitcnt lgkmcnt(0)
        s_sub_u32 s54, s54, s52
        s_sub_u32 s56, s56, s52
        s_sub_u32 s58, s58, s52
        s_sub_u32 s60, s60, s62
        s_sub_u32 s70, s70, s52
        s_sub_u32 s72, s72, s52
        s_add_u32 s64, s6, 0x4000000
        s_addc_u32 s65, s7, 0
        s_mov_b32 s66, 0x100000
        s_mov_b32 s67, 0x00020000
        s_lshl_b32 s47, s2, 3
        s_add_u32 s47, s47, s{sWave}
        s_lshl_b32 s47, s47, 4
        v_mov_b32 v{T}, s47
        v_mov_b32 v{T+4}, s54
        v_mov_b32 v{T+5}, s56
        v_mov_b32 v{T+6}, s58
        v_mov_b32 v{T+7}, s60
        buffer_store_dwordx4 v[{T+4}:{T+7}], v{T}, s[64:67], 0 offen
        v_mov_b32 v{T+2}, s70
        v_mov_b32 v{T+3}, s72
        v_add_u32 v{T}, 0x80000, v{T}
        buffer_store_dwordx2 v[{T+2}:{T+3}], v{T}, s[64:67], 0 offen
        """)
    a("""
    L_k3_end:
    s_endpgm
    """)
    txt = a.text()
    txt = txt.replace("    DIAG0\n", "    s_memtime s[52:53]\n    s_memrealtime s[62:63]\n" if diag else "")
    txt = txt.replace("    DIAG1\n", "    s_memtime s[56:57]\n" if diag else "")
    txt = txt.replace("    DIAG2\n", "    s_memtime s[70:71]\n" if diag else "")
    txt = txt.replace("    DIAG3\n", "    s_memtime s[72:73]\n" if diag else "")
    return txt, kernel_desc(name, 224, 96)
K3_LDS = 4*max(WREG, 5*WB)

def gen_mlp2_waves(a, lds_base, nbar_total, X=(), diag=False):
    NK = 12
    R = dict(vWD=2, vA=7, vR=11, T=12, Wf=16, Af=56, ACC=88)
    T = R["T"]; ACC = R["ACC"]
    sW, sRb, sCg, sAoff, sLds, sWoff = 40, 41, 42, 44, 45, 43
    S = dict(srdW=8, srdA=12, sWoff=sWoff, sAoff=sAoff, sLds=sLds, sT=47, sWv=sW)
    NWB = 3
    if "mlpidle" in X:
        for _ in range(nbar_total): a("s_barrier")
        a("s_endpgm")
        return
    if "prio" in X: a("s_setprio 2")
    a("s_barrier")
    a(f"""
    s_load_dwordx2 s[6:7], s[0:1], 48
    s_sub_u32 s{sW}, s16, 8
    s_and_b32 s28, s2, 7
    s_lshr_b32 s29, s2, 3
    s_lshl_b32 s28, s28, 2
    s_and_b32 s30, s29, 3
    s_add_u32 s{sRb}, s28, s30
    s_lshr_b32 s{sCg}, s29, 2
    s_mul_i32 s{sLds}, s{sW}, {NWB*WB}
    s_add_u32 s{sLds}, s{sLds}, {lds_base}
    """)
    gemm_setup(a, R, S)
    a(f"""
    s_mul_i32 s{sAoff}, s{sRb}, {4*69632}
    s_mul_i32 s28, s{sW}, {NK*1024}
    s_add_u32 s{sAoff}, s{sAoff}, s28
    s_add_u32 s{sAoff}, s{sAoff}, {20*1024}
    s_mul_i32 s46, s{sCg}, 160
    s_mul_i32 s{sWoff}, s{sW}, {NK*32*1280}
    s_add_u32 s{sWoff}, s{sWoff}, s46
    s_lshl_b32 s28, s{sRb}, 3
    s_add_u32 s28, s28, s{sCg}
    s_lshl_b32 s28, s28, 2
    s_add_u32 s28, s28, s{sW}
    s_mul_i32 s48, s28, {5*1024}
    s_waitcnt lgkmcnt(0)
    s_mov_b32 s8, s6
    s_mov_b32 s9, s7
    s_mov_b32 s10, {1536*1280}
    s_mov_b32 s11, 0x00020000
    s_add_u32 s12, s4, {AP_OFF}
    s_addc_u32 s13, s5, 0
    s_mov_b32 s14, {AP_BYTES}
    s_mov_b32 s15, 0x00020000
    s_add_u32 s20, s4, {PART_OFF}
    s_addc_u32 s21, s5, 0
    s_mov_b32 s22, {PART_BYTES}
    s_mov_b32 s23, 0x00020000
    """)
    vm = VmTrack()
    def init_acc():
        for i in range(80): a(f"v_mov_b32 v{ACC+i}, 0")
    bars = [1, 3, 4, 6, 8, 9, 11]
    assert len(bars) == nbar_total-3
    gemm_loop(a, R, S, NK, NWB=NWB, NAB=2, vm=vm, init_acc=init_acc, bar_after=bars)
    a(f"""
    v_lshlrev_b32 v{T}, 4, v1
    v_add_u32 v{T+1}, s{sLds}, v{T}
    s_nop 7
    """)
    for d in range(1, 4):
        for t in range(5):
            c = ACC + (t*4+d)*4
            a(f"ds_write_b128 v{T+1}, v[{c}:{c+3}] offset:{(d-1)*5120 + t*1024}")
    a("s_waitcnt lgkmcnt(0)\ns_barrier")
    IN = 16
    for d in range(1, 4):
        a(f"""
        s_sub_u32 s47, s{sW}, {d}
        s_and_b32 s47, s47, 3
        s_mul_i32 s47, s47, {NWB*WB}
        s_add_u32 s47, s47, {lds_base + (d-1)*5120}
        v_add_u32 v{T+1}, s47, v{T}
        """)
        for t in range(5):
            r = IN + ((d-1)*5+t)*4
            a(f"ds_read_b128 v[{r}:{r+3}], v{T+1} offset:{t*1024}")
    a("s_waitcnt lgkmcnt(0)")
    for t in range(5):
        c = ACC + t*16
        for d in range(3):
            r = IN + (d*5+t)*4
            for h in range(2):
                a(f"v_pk_add_f32 v[{c+2*h}:{c+2*h+1}], v[{c+2*h}:{c+2*h+1}], v[{r+2*h}:{r+2*h+1}]")
        if t == 4: a(f"s_add_u32 s48, s48, 4096")
        a(f"buffer_store_dwordx4 v[{c}:{c+3}], v{T}, s[20:23], s48 offen offset:{(t%4)*1024}")
    if diag:
        a(f"""
        s_memtime s[58:59]
        s_waitcnt lgkmcnt(0)
        s_sub_u32 s58, s58, s32
        s_add_u32 s64, s4, 0x4100000
        s_addc_u32 s65, s5, 0
        s_mov_b32 s66, 0x100000
        s_mov_b32 s67, 0x00020000
        s_lshl_b32 s47, s2, 2
        s_add_u32 s47, s47, s{sW}
        s_lshl_b32 s47, s47, 2
        v_mov_b32 v{T}, s47
        v_mov_b32 v{T+1}, s58
        buffer_store_dword v{T+1}, v{T}, s[64:67], 0 offen
        """)
    a("s_barrier")
    a("s_endpgm")
    return NWB*WB*4
```
